```python
import torch

def _softmax(x, axis=-1):
    return torch.softmax(x, dim=axis)

def _gelu(x):
    return torch.nn.functional.gelu(x, approximate='tanh')

def _silu(x):
    return torch.nn.functional.silu(x)

def _sigmoid(x):
    return torch.sigmoid(x)

def _layernorm(x, axis=-1, eps=1e-05):
    m = x.mean(dim=axis, keepdim=True)
    v = x.var(dim=axis, keepdim=True, unbiased=False)
    return (x - m) / torch.sqrt(v + eps)

def _scatter_add(tgt, idx, src, axis=0):
    return tgt.clone().index_add_(axis, idx, src)

def _segment_sum(src, seg, n):
    out = torch.zeros((n,) + src.shape[1:], dtype=src.dtype)
    return out.index_add_(0, seg, src)

def _pad(x, pw):
    flat = tuple((v for pair in reversed(pw) for v in pair))
    return torch.nn.functional.pad(x, flat)
kernel_name = 'adaLN_cond__linear_kernel_hedgehog__glu_gated_bilinear__prompt'

def setup_inputs():

    _w = lambda a: (lambda t: t.to(torch.bfloat16) if t.is_floating_point() else t)(torch.as_tensor(a))

    def _A_setup():
        B, S, D, H = (1, 2048, 512, 32)
        Dh = D // H
        return {'x': _w((lambda *s: torch.randn(*s, dtype=torch.bfloat16) * 0.1)(B, S, D)), 'wqkv': _w((lambda *s: torch.randn(*s, dtype=torch.bfloat16) * 0.2)(D, 3 * D)), 'w_phi': _w((lambda *s: torch.randn(*s, dtype=torch.bfloat16) * 0.2)(H, Dh, Dh) * Dh ** (-0.5)), 'wo': _w((lambda *s: torch.randn(*s, dtype=torch.bfloat16) * 0.2)(D, D))}
    _A_in = _A_setup()

    def _B_setup():
        B, S, D, F = (1, 2048, 512, 1376)
        return {'x': _w((lambda *s: torch.randn(*s, dtype=torch.bfloat16) * 0.1)(B, S, D)), 'w_gate': _w((lambda *s: torch.randn(*s, dtype=torch.bfloat16) * 3.2)(D, F) * D ** (-0.5)), 'w_up': _w((lambda *s: torch.randn(*s, dtype=torch.bfloat16) * 3.2)(D, F) * D ** (-0.5)), 'w_down': _w((lambda *s: torch.randn(*s, dtype=torch.bfloat16) * 3.2)(F, D) * F ** (-0.5))}
    _B_in = _B_setup()
    return {'A_x': _A_in['x'], 'A_wqkv': _A_in['wqkv'], 'A_w_phi': _A_in['w_phi'], 'A_wo': _A_in['wo'], 'B_x': _B_in['x'], 'B_w_gate': _B_in['w_gate'], 'B_w_up': _B_in['w_up'], 'B_w_down': _B_in['w_down'], 'c': _w((lambda *s: torch.randn(*s, dtype=torch.bfloat16) * 0.4)(1, 512) * 8.0), 'w_mod': _w((lambda *s: torch.randn(*s, dtype=torch.bfloat16) * 0.4)(512, 6 * 512) * 512 ** (-0.5) * 8.0)}

def reference(A_x, A_wqkv, A_w_phi, A_wo, B_x, B_w_gate, B_w_up, B_w_down, c, w_mod):

    def _A_ref(x, wqkv, w_phi, wo):
        B, S, D = x.shape
        H = 32
        Dh = D // H
        qkv = (lambda x, *d: x.permute(*d))((x @ wqkv).reshape(B, S, 3, H, Dh), 2, 0, 3, 1, 4)
        q, k, v = (qkv[0], qkv[1], qkv[2])
        pq = torch.einsum('bhsd,hdf->bhsf', q, w_phi)
        pk = torch.einsum('bhsd,hdf->bhsf', k, w_phi)
        phi_q = torch.concatenate([_softmax(pq, axis=-1), _softmax(-pq, axis=-1)], axis=-1)
        phi_k = torch.concatenate([_softmax(pk, axis=-1), _softmax(-pk, axis=-1)], axis=-1)
        kv = torch.einsum('bhsf,bhsd->bhfd', phi_k, v)
        z = torch.einsum('bhsf->bhf', phi_k)
        num = torch.einsum('bhqf,bhfd->bhqd', phi_q, kv)
        den = torch.einsum('bhqf,bhf->bhq', phi_q, z)[..., None] + 1e-06
        o = num / den
        return (lambda x, *d: x.permute(*d))(o, 0, 2, 1, 3).reshape(B, S, D) @ wo

    def _B_ref(x, w_gate, w_up, w_down):
        g = torch.einsum('bsd,df->bsf', x, w_gate)
        u = torch.einsum('bsd,df->bsf', x, w_up)
        h = g * u
        return torch.einsum('bsf,fd->bsd', h, w_down)
    x = A_x
    mod = (_silu(c) @ w_mod).reshape(c.shape[0], 6, 1, -1)
    sa, ca, ga, sb, cb, gb = (mod[:, 0].clone(), mod[:, 1].clone(), mod[:, 2].clone(), mod[:, 3].clone(), mod[:, 4].clone(), mod[:, 5].clone())
    h = _layernorm(x, axis=-1) * (1 + ca) + sa
    x = x + ga * _A_ref(h, A_wqkv, A_w_phi, A_wo)
    h = _layernorm(x, axis=-1) * (1 + cb) + sb
    x = x + gb * _B_ref(h, B_w_gate, B_w_up, B_w_down)
    return x
```

```python
import re

TRANS = ('v_exp_f32', 'v_log_f32', 'v_rcp_f32', 'v_rsq_f32', 'v_sqrt_f32', 'v_sin_f32', 'v_cos_f32',
         'v_rcp_iflag_f32')

_reg_re = re.compile(r'\b([vas])(\d+)\b|\b([vas])\[(\d+):(\d+)\]|\b(vcc|exec|m0|scc)\b')


def regs_of(op):
    out = []
    for m in _reg_re.finditer(op):
        if m.group(1):
            out.append(m.group(1) + m.group(2))
        elif m.group(3):
            for i in range(int(m.group(4)), int(m.group(5)) + 1):
                out.append(m.group(3) + str(i))
        else:
            out.append(m.group(6))
    return out


def split_ops(s):
    ops, depth, cur = [], 0, ''
    for ch in s:
        if ch in '[(':
            depth += 1
        if ch in '])':
            depth -= 1
        if ch == ',' and depth == 0:
            ops.append(cur.strip())
            cur = ''
        else:
            cur += ch
    if cur.strip():
        ops.append(cur.strip())
    return ops


class Ins:
    def __init__(self, text):
        self.text = text
        t = text.split(';')[0].strip()
        self.label = t.endswith(':')
        self.directive = t.startswith('.')
        self.mn = ''
        self.w, self.r = [], []
        self.cls = 'none'
        self.srcC = []
        self.srcAB = []
        self.storedata = []
        self.dpp = False
        self.passes = 0
        if self.label or self.directive or not t:
            return
        parts = t.split(None, 1)
        mn = parts[0]
        self.mn = mn
        rest = parts[1] if len(parts) > 1 else ''
        ops = split_ops(rest)
        mods = ''
        if ops:
            last = ops[-1].split(None, 1)
            if len(last) > 1 and not last[0].endswith('('):
                ops[-1] = last[0]
                mods = last[1]
        self.mods = mods
        R = [regs_of(o) for o in ops]
        base = re.sub(r'_(e32|e64|dpp|sdwa)$', '', mn)
        self.base = base
        if mn.startswith('v_mfma'):
            self.cls = 'mfma'
            self.passes = 8 if '32x32x16' in mn else 4 if '16x16x32' in mn else 16
            self.w = R[0]
            self.srcAB = R[1] + R[2]
            self.srcC = R[3] if len(R) > 3 else []
            self.r = self.srcAB + self.srcC
        elif mn.startswith('v_'):
            self.cls = 'valu'
            self.dpp = mn.endswith('_dpp') or 'row_' in mods or 'quad_perm' in mods
            if base.startswith('v_cmpx'):
                self.w = R[0] + ['exec']
                self.r = sum(R[1:], [])
            elif base.startswith('v_cmp'):
                self.w = R[0]
                self.r = sum(R[1:], [])
            elif base.startswith('v_permlane'):
                self.w = R[0] + R[1]
                self.r = R[0] + R[1]
            elif base in ('v_add_co_u32', 'v_sub_co_u32', 'v_addc_co_u32', 'v_subb_co_u32', 'v_mad_u64_u32', 'v_div_scale_f32'):
                self.w = R[0] + R[1]
                self.r = sum(R[2:], [])
            elif base == 'v_nop':
                pass
            else:
                self.w = R[0]
                self.r = sum(R[1:], [])
                if base in ('v_fmac_f32', 'v_dot2c_f32_bf16', 'v_pk_fmac_f16', 'v_writelane_b32') or self.dpp:
                    self.r = self.r + R[0]
                if base == 'v_cndmask_b32' and len(R) == 3:
                    self.r = self.r + ['vcc']
        elif mn.startswith('buffer_') or mn.startswith('global_'):
            self.cls = 'vmem'
            lds = bool(re.search(r'\blds\b', mods)) or 'load_lds' in mn
            self.lds = lds
            if mn in ('buffer_inv', 'buffer_wbl2'):
                pass
            elif 'load' in mn and not lds:
                self.w = R[0]
                self.r = sum(R[1:], [])
                if 'd16' in mn:
                    self.r = self.r + R[0]
            elif lds:
                self.r = sum(R, []) + ['m0']
            else:
                self.r = sum(R, [])
                data = R[0] if mn.startswith('buffer_') else R[1]
                if 'x4' in mn or 'x3' in mn:
                    self.storedata = data
                if 'atomic' in mn and 'sc0' in mods:
                    self.w = data
        elif mn.startswith('ds_'):
            self.cls = 'ds'
            if 'read' in mn or 'permute' in mn or 'swizzle' in mn:
                self.w = R[0]
                self.r = sum(R[1:], [])
            else:
                self.r = sum(R, [])
        elif mn.startswith('s_load') or mn.startswith('s_mem') or mn.startswith('s_buffer_load'):
            self.cls = 'smem'
            self.w = R[0]
            self.r = sum(R[1:], [])
        elif mn.startswith('s_'):
            self.cls = 'salu'
            if mn.startswith('s_cmp') or mn.startswith('s_cbranch') or mn in (
                    's_branch', 's_waitcnt', 's_barrier', 's_nop', 's_endpgm', 's_sleep', 's_setprio', 's_bitcmp0_b32', 's_bitcmp1_b32'):
                self.r = sum(R, [])
            else:
                self.w = R[0] if R else []
                self.r = sum(R[1:], [])
                if 'saveexec' in mn:
                    self.w = self.w + ['exec']
        else:
            raise ValueError('unknown instruction: ' + text)

    def states(self):
        if self.label or self.directive or not self.mn:
            return 0
        if self.mn == 's_nop':
            return int(self.text.split(';')[0].split()[1], 0) + 1
        return 1


def isv(r):
    return r[0] in 'va' and r not in ('vcc',)


def iss(r):
    return (r[0] == 's' and r != 'scc') or r == 'vcc'


def need(prod, cons):
    n = 0
    pw = set(prod.w)
    cr = set(cons.r)
    cw = set(cons.w)
    if prod.cls == 'valu':
        sw = {r for r in pw if iss(r)}
        vw = {r for r in pw if isv(r)}
        if sw:
            if cons.cls == 'vmem' and sw & cr:
                n = max(n, 5)
            if cons.cls in ('valu',) and sw & cr:
                n = max(n, 4 if cons.base in ('v_readlane_b32', 'v_writelane_b32') else 2)
            if cons.cls == 'valu' and cons.base == 'v_div_fmas_f32' and 'vcc' in sw:
                n = max(n, 4)
            if cons.cls in ('salu', 'smem', 'ds') and sw & cr:
                n = max(n, 1)
        if vw:
            if cons.cls == 'valu':
                if cons.dpp and vw & cr:
                    n = max(n, 2)
                if cons.base.startswith('v_permlane') and vw & cr:
                    n = max(n, 2)
                if cons.base in ('v_readlane_b32', 'v_readfirstlane_b32') and vw & cr:
                    n = max(n, 1)
                if prod.base in TRANS and cons.base not in TRANS and vw & (cr | cw):
                    n = max(n, 1)
                if prod.base in TRANS and cons.base in TRANS and vw & cr:
                    n = max(n, 1)
                if prod.base.startswith('v_dot'):
                    if cons.base == prod.base:
                        ab = set()
                        ops = split_ops(cons.text.split(';')[0].strip().split(None, 1)[1])
                        for o in ops[1:3]:
                            ab |= set(regs_of(o))
                        if vw & ab:
                            n = max(n, 3)
                    elif vw & (cr | cw):
                        n = max(n, 3)
            if cons.cls == 'mfma' and vw & cr:
                n = max(n, 3 if prod.base.startswith('v_dot') else 2)
            if prod.base.startswith('v_dot') and cons.cls in ('vmem', 'ds') and vw & cr:
                n = max(n, 3)
            if prod.base in TRANS and cons.cls in ('vmem', 'ds') and vw & cr:
                n = max(n, 1)
        if 'exec' in pw:
            if cons.cls == 'mfma':
                n = max(n, 4)
            if cons.cls == 'valu' and cons.dpp:
                n = max(n, 5)
            if cons.cls == 'valu' and (cons.base.startswith('v_permlane') or cons.base in (
                    'v_readlane_b32', 'v_readfirstlane_b32', 'v_writelane_b32')):
                n = max(n, 4)
            if cons.cls == 'valu' and 'exec' in cr:
                n = max(n, 2)
    if prod.cls == 'salu' and 'm0' in pw:
        if (cons.cls == 'vmem' and getattr(cons, 'lds', False)) or 'addtid' in cons.mn or 'movrel' in cons.mn:
            n = max(n, 1)
    if prod.cls == 'vmem' and prod.storedata:
        if set(prod.storedata) & cw:
            n = max(n, 2 if cons.cls in ('valu', 'mfma') else 1)
    if prod.cls == 'mfma':
        p = prod.passes
        tab_ovl = {2: 4, 4: 6, 8: 10, 16: 18}
        tab_ab = {2: 5, 4: 8, 8: 12, 16: 20}
        war = {2: 1, 4: 3, 8: 7, 16: 15}
        if cons.cls == 'mfma':
            if pw & set(cons.srcAB):
                n = max(n, tab_ab[p])
            if pw & set(cons.srcC):
                if list(cons.srcC) == list(prod.w) and cons.passes == p:
                    n = max(n, 2 if p == 2 else 0)
                else:
                    n = max(n, tab_ovl[p])
            elif pw & cw:
                n = max(n, tab_ovl[p])
        else:
            if pw & (cr | cw):
                n = max(n, tab_ab[p])
            if cons.cls == 'valu' and set(prod.srcC) & cw:
                n = max(n, war[p])
            if cons.cls in ('vmem', 'ds') and set(prod.srcC) & cw:
                n = max(n, war[p])
    return n


MAXLOOK = 24


def pad_hazards(lines):
    out = []
    for text in lines:
        if text.strip() == '.hz_flush':
            dist = 0
            req = 0
            for p in reversed(out[-MAXLOOK:]):
                worst = 0
                if p.cls == 'mfma':
                    worst = {2: 5, 4: 8, 8: 12, 16: 20}[p.passes]
                elif p.cls == 'valu':
                    worst = 5
                elif p.cls == 'vmem' and p.storedata:
                    worst = 2
                elif p.cls == 'salu' and 'm0' in p.w:
                    worst = 1
                req = max(req, worst - dist)
                dist += p.states()
            while req > 0:
                k = min(req, 16)
                out.append(Ins(f'    s_nop {k-1}'))
                req -= k
            continue
        ins = Ins(text)
        if ins.mn:
            dist = 0
            req = 0
            for p in reversed(out):
                if dist >= 20:
                    break
                if p.mn:
                    nn = need(p, ins)
                    if nn > dist:
                        req = max(req, nn - dist)
                dist += p.states()
            while req > 0:
                k = min(req, 16)
                out.append(Ins(f'    s_nop {k-1}'))
                req -= k
        out.append(ins)
    return [i.text for i in out]


class Kern:
    def __init__(self, name):
        self.name = name
        self.L = []
        self.vm = 0
        self.lg = 0
        self.vm_done = 0
        self.lg_done = 0
        self.nlabel = 0

    def e(self, s):
        self.L.append('    ' + s)

    def c(self, s):
        self.L.append('    ; ' + s)

    def label(self, s):
        self.L.append(s + ':')

    def newlabel(self, p='L'):
        self.nlabel += 1
        return f'{p}_{self.name}_{self.nlabel}'

    def flush(self):
        self.L.append('.hz_flush')

    def vmem(self, s):
        self.e(s)
        self.vm += 1
        return self.vm

    def ds(self, s):
        self.e(s)
        self.lg += 1
        return self.lg

    def wait(self, vm=None, lg=None):
        parts = []
        if vm is not None and vm > self.vm_done:
            n = self.vm - vm
            if n > 63:
                n = 63
            parts.append(f'vmcnt({n})')
            self.vm_done = max(self.vm_done, self.vm - n)
        if lg is not None and lg > self.lg_done:
            n = self.lg - lg
            if n > 15:
                n = 15
            parts.append(f'lgkmcnt({n})')
            self.lg_done = max(self.lg_done, self.lg - n)
        if parts:
            self.e('s_waitcnt ' + ' '.join(parts))

    def wait_all(self, vm=True, lg=True):
        parts = []
        if vm:
            parts.append('vmcnt(0)')
            self.vm_done = self.vm
        if lg:
            parts.append('lgkmcnt(0)')
            self.lg_done = self.lg
        self.e('s_waitcnt ' + ' '.join(parts))

    def srd(self, d, lo, hi, nbytes):
        self.e(f's_mov_b32 s{d}, {lo}')
        self.e(f's_and_b32 s{d+1}, {hi}, 0xffff')
        self.e(f's_mov_b32 s{d+2}, {nbytes}')
        self.e(f's_mov_b32 s{d+3}, 0x00020000')

    def text(self):
        return '\n'.join(pad_hazards(self.L))


def vr(b, n=1):
    return f'v{b}' if n == 1 else f'v[{b}:{b+n-1}]'


def ar(b, n=1):
    return f'a{b}' if n == 1 else f'a[{b}:{b+n-1}]'


def sr(b, n=1):
    return f's{b}' if n == 1 else f's[{b}:{b+n-1}]'


def kernel_text(k, nv, na, nsgpr=96):
    acc_off = (nv + 3) // 4 * 4
    nfv = acc_off + na if na else nv
    code = f""".globl {k.name}
.p2align 8
.type {k.name},@function
{k.name}:
{k.text()}
"""
    desc = f""".p2align 6
.amdhsa_kernel {k.name}
  .amdhsa_next_free_vgpr {nfv}
  .amdhsa_next_free_sgpr {nsgpr}
  .amdhsa_accum_offset {acc_off}
  .amdhsa_group_segment_fixed_size 0
  .amdhsa_kernarg_size 104
  .amdhsa_user_sgpr_count 2
  .amdhsa_user_sgpr_kernarg_segment_ptr 1
  .amdhsa_system_sgpr_workgroup_id_x 1
.end_amdhsa_kernel
"""
    return code, desc
```

```python
import sys
sys.path.insert(0, 'dev')
from asmgen import *

NAME = 'adaLN_cond__linear_kernel_hedgehog__glu_gated_bilinear__prompt'
MODF = 0x0000
MODB = 0x3000
ST1 = 0x5000
KVP = 0x10000
KVP_STRIDE = 4608
PHQ = 0x200000
OBUF = 0x600000
X1S = 0x800000
EXT8 = 0xA00000
X1K = 0x1300000
ST2 = 0xC00000
HH = 0xD00000
WS_SIZE = 0x1800000
LOG2E = 0x3fb8aa3b

HEADER = open('cdna_kernels/%s.s.ref' % NAME).read().split('; Override launch')[0]


def bf16r(k, dst, src, tmp):
    k.e(f'v_cvt_pk_bf16_f32 {tmp}, {src}, {src}')
    k.e(f'v_lshlrev_b32 {dst}, 16, {tmp}')


def gen_k0():
    k = Kern('k0_mod_kernel')
    end = k.newlabel('END')
    k.e('s_cmp_ge_u32 s2, 96')
    k.e(f's_cbranch_scc1 {end}')
    k.e('s_load_dwordx4 s[4:7], s[0:1], 64')
    k.e('s_load_dwordx2 s[8:9], s[0:1], 96')
    k.e('v_lshrrev_b32 v1, 2, v0')
    k.e('v_and_b32 v2, 3, v0')
    k.e('v_mul_u32_u24 v3, 6144, v1')
    k.e('v_lshl_add_u32 v3, v2, 4, v3')
    k.e('v_lshlrev_b32 v4, 1, v1')
    k.e('s_lshl_b32 s24, s2, 6')
    k.e('s_waitcnt lgkmcnt(0)')
    k.srd(12, 's4', 's5', 1028)
    k.srd(16, 's6', 's7', 512 * 3072 * 2)
    k.srd(20, 's8', 's9', WS_SIZE)
    tc = []
    for i in range(8):
        tc.append(k.vmem(f'buffer_load_ushort v{8+i}, v4, s[12:15], 0 offen offset:{i*128}'))
    tw = []
    for i in range(8):
        tw.append(k.vmem(f'buffer_load_dwordx4 {vr(32+4*i,4)}, v3, s[16:19], s24 offen'))
        if i < 7:
            k.e(f's_add_u32 s24, s24, {64*6144}')
    for j in range(8):
        k.e(f'v_mov_b32 v{16+j}, 0')
    k.e(f's_mov_b32 s25, 0x{LOG2E:x}')
    k.wait(vm=tc[-1])
    for i in range(8):
        k.e(f'v_lshlrev_b32 v{8+i}, 16, v{8+i}')
    for i in range(8):
        k.e(f'v_mul_f32 v{24+i}, s25, v{8+i}')
    for i in range(8):
        k.e(f'v_exp_f32 v{24+i}, -v{24+i}')
    for i in range(8):
        k.e(f'v_add_f32 v{24+i}, 1.0, v{24+i}')
    for i in range(8):
        k.e(f'v_rcp_f32 v5, v{24+i}')
        k.e(f'v_mul_f32 v6, v{8+i}, v5')
        k.e(f'v_fma_f32 v7, -v6, v{24+i}, v{8+i}')
        k.e(f'v_fma_f32 v7, v7, v5, v6')
        k.e(f'v_cmp_class_f32 vcc, v7, 3')
        k.e(f'v_cndmask_b32 v{8+i}, v7, v6, vcc')
    for i in range(8):
        bf16r(k, f'v{8+i}', f'v{8+i}', f'v{24+i}')
    for i in range(8):
        k.wait(vm=tw[i])
        for j in range(4):
            w = 32 + 4 * i + j
            k.e(f'v_lshlrev_b32 v5, 16, v{w}')
            k.e(f'v_and_b32 v6, 0xffff0000, v{w}')
            k.e(f'v_fmac_f32 v{16+2*j}, v{8+i}, v5')
            k.e(f'v_fmac_f32 v{17+2*j}, v{8+i}, v6')
    k.e('v_lshlrev_b32 v5, 5, v0')
    k.ds('ds_write_b128 v5, v[16:19]')
    k.ds('ds_write_b128 v5, v[20:23] offset:16')
    k.e('v_and_b32 v6, 31, v0')
    k.e('v_lshrrev_b32 v7, 5, v0')
    k.e('v_lshlrev_b32 v7, 10, v7')
    k.e('v_lshl_add_u32 v7, v6, 2, v7')
    k.wait_all(vm=False)
    k.e('s_barrier')
    for i in range(8):
        k.ds(f'ds_read_b32 v{8+i}, v7 offset:{i*128}')
    k.wait_all(vm=False)
    for i in (1, 2, 4):
        for j in range(0, 8, 2 * i):
            k.e(f'v_add_f32 v{8+j}, v{8+j}, v{8+j+i}')
    k.e('v_lshlrev_b32 v5, 2, v0')
    k.ds('ds_write_b32 v5, v8 offset:8192')
    k.wait_all(vm=False)
    k.e('s_barrier')
    k.e('v_cmp_gt_u32 vcc, 32, v0')
    k.e('s_and_saveexec_b64 s[26:27], vcc')
    k.e(f's_cbranch_execz {end}')
    for i in range(8):
        k.ds(f'ds_read_b32 v{8+i}, v5 offset:{8192+i*128}')
    k.wait_all(vm=False)
    for i in (1, 2, 4):
        for j in range(0, 8, 2 * i):
            k.e(f'v_add_f32 v{8+j}, v{8+j}, v{8+j+i}')
    bf16r(k, 'v8', 'v8', 'v9')
    k.e('s_lshr_b32 s24, s2, 4')
    skip = k.newlabel('NOONE')
    k.e('s_cmp_eq_u32 s24, 1')
    k.e('s_cselect_b32 s25, 1, 0')
    k.e('s_cmp_eq_u32 s24, 4')
    k.e('s_cselect_b32 s25, 1, s25')
    k.e('s_cmp_eq_u32 s25, 0')
    k.e(f's_cbranch_scc1 {skip}')
    k.e('v_add_f32 v8, 1.0, v8')
    bf16r(k, 'v8', 'v8', 'v9')
    k.label(skip)
    k.flush()
    k.e('s_lshl_b32 s25, s2, 7')
    k.vmem(f'buffer_store_dword v8, v5, s[20:23], s25 offen offset:{MODF}')
    k.e('v_lshrrev_b32 v9, 16, v8')
    k.e('v_lshlrev_b32 v6, 1, v0')
    k.e('s_lshl_b32 s25, s2, 6')
    k.e(f's_add_u32 s25, s25, {MODB}')
    k.vmem('buffer_store_short v9, v6, s[20:23], s25 offen')
    k.e('s_cmp_ge_u32 s24, 2')
    k.e(f's_cbranch_scc1 {end}')
    k.e('s_and_b32 s25, s2, 15')
    k.e('s_lshl_b32 s25, s25, 8')
    k.e('s_xor_b32 s26, s24, 1')
    k.e('s_lshl_b32 s26, s26, 2')
    k.e('s_add_u32 s25, s25, s26')
    k.e(f's_add_u32 s25, s25, {ST1}')
    k.e('v_lshlrev_b32 v6, 3, v0')
    k.vmem('buffer_store_dword v8, v6, s[20:23], s25 offen')
    k.label(end)
    k.e('s_endpgm')
    return k, 64, 0, (96, 256, 9216)


def build(kernels, path):
    s = HEADER
    for k, nv, na, (g, b, lds) in kernels:
        s += f'; @launch kernel={k.name} grid=({g},1,1) block=({b},1,1) lds={lds}\n'
    s += '.amdgcn_target "amdgcn-amd-amdhsa--gfx950"\n.text\n'
    descs = ''
    for k, nv, na, _ in kernels:
        c, d = kernel_text(k, nv, na)
        s += c
        descs += d
    s += '.section .rodata,"a"\n' + descs
    open(path, 'w').write(s)


if __name__ == '__main__':
    ks = [gen_k0()]
    build(ks, 'out.s')
```

```python
from gen import *

L_WKV = 0
L_WQ = 33 * 2048
L_PHK = L_WQ + 33 * 1024
L_VFR = L_PHK + 20480
L_RB = L_VFR + 8192


def wg_decode(k, smb, sj):
    k.e(f's_and_b32 s{smb}, s2, 7')
    k.e(f's_lshl_b32 s{smb}, s{smb}, 1')
    k.e(f's_bfe_u32 s{sj}, s2, 0x10003')
    k.e(f's_or_b32 s{smb}, s{smb}, s{sj}')
    k.e(f's_lshr_b32 s{sj}, s2, 4')


def softmax16(k, P, E, OUT, t, sL):
    mx, mn, m2, n2 = t, t + 2, t + 4, t + 5
    k.e(f'v_max3_f32 v{mx}, v{P}, v{P+1}, v{P+2}')
    k.e(f'v_min3_f32 v{mn}, v{P}, v{P+1}, v{P+2}')
    k.e(f'v_max3_f32 v{m2}, v{P+8}, v{P+9}, v{P+10}')
    k.e(f'v_min3_f32 v{n2}, v{P+8}, v{P+9}, v{P+10}')
    for j in (3, 5):
        k.e(f'v_max3_f32 v{mx}, v{mx}, v{P+j}, v{P+j+1}')
        k.e(f'v_min3_f32 v{mn}, v{mn}, v{P+j}, v{P+j+1}')
        k.e(f'v_max3_f32 v{m2}, v{m2}, v{P+8+j}, v{P+8+j+1}')
        k.e(f'v_min3_f32 v{n2}, v{n2}, v{P+8+j}, v{P+8+j+1}')
    k.e(f'v_max3_f32 v{mx}, v{mx}, v{P+7}, v{P+15}')
    k.e(f'v_min3_f32 v{mn}, v{mn}, v{P+7}, v{P+15}')
    k.e(f'v_max_f32 v{mx}, v{mx}, v{m2}')
    k.e(f'v_min_f32 v{mn}, v{mn}, v{n2}')
    k.e(f'v_mul_f32 v{mx}, s{sL}, v{mx}')
    k.e(f'v_mul_f32 v{mn}, s{sL}, v{mn}')
    for j in range(8):
        k.e(f'v_pk_fma_f32 {vr(E+2*j,2)}, {vr(P+2*j,2)}, {sr(sL,2)}, {vr(mx,2)} op_sel_hi:[1,1,0] neg_lo:[0,0,1] neg_hi:[0,0,1]')
    for j in range(8):
        k.e(f'v_pk_fma_f32 {vr(E+16+2*j,2)}, {vr(P+2*j,2)}, {sr(sL,2)}, {vr(mn,2)} op_sel_hi:[1,1,0] neg_lo:[1,0,0] neg_hi:[1,0,0]')
    for j in range(32):
        k.e(f'v_exp_f32 v{E+j}, v{E+j}')
    sp, sn = t, t + 2
    k.e(f'v_pk_add_f32 {vr(sp,2)}, {vr(E,2)}, {vr(E+2,2)}')
    k.e(f'v_pk_add_f32 {vr(sn,2)}, {vr(E+16,2)}, {vr(E+18,2)}')
    for j in range(2, 8):
        k.e(f'v_pk_add_f32 {vr(sp,2)}, {vr(sp,2)}, {vr(E+2*j,2)}')
        k.e(f'v_pk_add_f32 {vr(sn,2)}, {vr(sn,2)}, {vr(E+16+2*j,2)}')
    k.e(f'v_add_f32 v{sp}, v{sp}, v{sp+1}')
    k.e(f'v_add_f32 v{sn}, v{sn}, v{sn+1}')
    k.e(f'v_rcp_f32 v{sp}, v{sp}')
    k.e(f'v_rcp_f32 v{sn}, v{sn}')
    for j in range(8):
        k.e(f'v_pk_mul_f32 {vr(E+2*j,2)}, {vr(E+2*j,2)}, {vr(sp,2)} op_sel_hi:[1,0]')
    for j in range(8):
        k.e(f'v_pk_mul_f32 {vr(E+16+2*j,2)}, {vr(E+16+2*j,2)}, {vr(sn,2)} op_sel_hi:[1,0]')
    for j in range(16):
        k.e(f'v_cvt_pk_bf16_f32 v{OUT+j}, v{E+2*j}, v{E+2*j+1}')


def gen_k1(debug=None):
    k = Kern('k1_qkv_kernel')
    end = k.newlabel('END')
    k.e('s_cmp_ge_u32 s2, 256')
    k.e(f's_cbranch_scc1 {end}')
    k.e('s_load_dwordx4 s[4:7], s[0:1], 0')
    k.e('s_load_dwordx2 s[8:9], s[0:1], 16')
    k.e('s_load_dwordx2 s[10:11], s[0:1], 96')
    MB, HP, W = 28, 29, 30
    wg_decode(k, MB, HP)
    k.e('v_lshrrev_b32 v2, 6, v0')
    k.e('v_and_b32 v1, 63, v0')
    k.e(f'v_readfirstlane_b32 s{W}, v2')
    k.e('v_lshlrev_b32 v3, 4, v1')
    k.e('v_lshrrev_b32 v4, 2, v1')
    k.e('v_and_b32 v5, 3, v1')
    k.e('v_mul_u32_u24 v6, 3072, v4')
    k.e('v_lshl_add_u32 v6, v5, 4, v6')
    k.e('v_lshlrev_b32 v7, 3, v4')
    k.e('s_waitcnt lgkmcnt(0)')
    k.srd(12, 's4', 's5', 2048 * 1024)
    k.srd(16, 's6', 's7', 512 * 3072)
    k.srd(20, 's8', 's9', 32 * 512 + 4)
    k.srd(24, 's10', 's11', WS_SIZE)
    k.e(f's_lshl_b32 s31, s{MB}, 17')
    k.e(f's_lshl_b32 s32, s{W}, 15')
    k.e('s_add_u32 s31, s31, s32')
    k.e('s_mov_b32 m0, s32')
    tx = []
    for r in range(32):
        k.e(f'v_xor_b32 v{8+(r&1)}, {(r&15)*16}, v3')
        tx.append(k.vmem(f'buffer_load_dwordx4 v{8+(r&1)}, s[12:15], s31 offen offset:{(r&3)*1024} lds'))
        if (r & 3) == 3 and r != 31:
            k.e('s_add_u32 s31, s31, 4096')
            k.e('s_add_u32 m0, m0, 4096')
    WR = 32
    STR = 128
    k.e(f's_mul_i32 s33, s{W}, {32*3072}')
    k.e(f's_lshl_b32 s34, s{HP}, 6')
    k.e('s_add_u32 s33, s33, s34')
    k.e(f's_lshl_b32 s35, s{W}, 8')
    k.e(f's_add_u32 s35, s35, {ST1}')
    tst = {}
    for c in range(4):
        for i in range(2):
            tst[(c, i)] = k.vmem(f'buffer_load_dwordx2 {vr(STR+2*(2*c+i),2)}, v7, s[24:27], s35 offen offset:{c*1024+i*128}')
    twr = {}

    def wreg(c, i, seg):
        if seg == 0:
            return WR + 64 + 4 * (2 * c + i)
        return WR + 4 * (2 * (2 * c + i) + (seg - 1))
    for c in range(4):
        for i in range(2):
            k.e(f's_add_u32 s{36+2*c+i}, s33, {(128*c+16*i)*3072}')
    for c in range(4):
        for i in range(2):
            for seg in (1, 2):
                twr[(c, i, seg)] = k.vmem(f'buffer_load_dwordx4 {vr(wreg(c,i,seg),4)}, v6, s[16:19], s{36+2*c+i} offen offset:{seg*1024}')
    for c in range(4):
        for i in range(2):
            twr[(c, i, 0)] = k.vmem(f'buffer_load_dwordx4 {vr(wreg(c,i,0),4)}, v6, s[16:19], s{36+2*c+i} offen')
    PHI = 248
    k.e('v_bfe_u32 v10, v1, 2, 1')
    k.e('v_lshlrev_b32 v10, 9, v10')
    k.e('v_lshrrev_b32 v11, 5, v1')
    k.e('v_lshl_add_u32 v10, v11, 8, v10')
    k.e('v_bfe_u32 v11, v1, 3, 2')
    k.e('v_lshl_add_u32 v10, v11, 3, v10')
    k.e('v_lshl_add_u32 v10, v5, 1, v10')
    k.e(f's_lshl_b32 s44, s{HP}, 10')
    for e in range(8):
        tphi = k.vmem(f'buffer_load_ushort v{PHI+(e>>1)+4*(e&1)}, v10, s[20:23], s44 offen offset:{e*32}')
    XA = 16
    k.e('v_and_b32 v10, 31, v1')
    k.e('v_lshrrev_b32 v11, 5, v1')
    k.e('v_and_b32 v12, 15, v1')
    k.e('v_xor_b32 v12, v12, v11')
    k.e('v_lshlrev_b32 v12, 4, v12')
    k.e('v_lshl_add_u32 v12, v10, 10, v12')
    k.e(f'v_add_u32 v12, s32, v12')
    for s in range(8):
        k.e(f'v_xor_b32 v{XA+s}, {2*s*16}, v12')
    SA = 24
    for j in range(4):
        k.e(f'v_mov_b32 v{SA+j}, 0')
    k.e('s_mov_b32 s45, 0x3f803f80')
    TMP = 176
    k.wait(vm=tx[-1])
    for g in range(4):
        tk = []
        for s8 in range(8):
            s = 8 * g + s8
            k.ds(f'ds_read_b128 {ar(4*s,4)}, v{XA+s8} offset:{g*256}')
            tk.append(k.ds(f'ds_read_b128 {vr(TMP+4*s8,4)}, v{XA+s8} offset:{g*256}'))
        for s8 in range(8):
            k.wait(lg=tk[s8])
            for j in range(4):
                r = TMP + 4 * s8 + j
                k.e(f'v_dot2c_f32_bf16 v{SA+(j&1)}, s45, v{r}')
                k.e(f'v_dot2c_f32_bf16 v{SA+2+(j&1)}, v{r}, v{r}')
    k.wait_all(vm=False)
    k.e('s_barrier')
    k.e(f'v_add_f32 v{SA}, v{SA}, v{SA+1}')
    k.e(f'v_add_f32 v{SA+2}, v{SA+2}, v{SA+3}')
    k.e(f'v_mov_b32 v{SA+1}, v{SA}')
    k.e(f'v_mov_b32 v{SA+3}, v{SA+2}')
    k.e(f'v_permlane32_swap_b32 v{SA}, v{SA+1}')
    k.e(f'v_permlane32_swap_b32 v{SA+2}, v{SA+3}')
    k.e(f'v_add_f32 v{SA}, v{SA}, v{SA+1}')
    k.e(f'v_add_f32 v{SA+2}, v{SA+2}, v{SA+3}')
    k.e(f'v_mul_f32 v{SA}, 0x3b000000, v{SA}')
    k.e(f'v_mul_f32 v{SA+2}, 0x3b000000, v{SA+2}')
    k.e(f'v_fma_f32 v{SA+2}, -v{SA}, v{SA}, v{SA+2}')
    k.e(f'v_max_f32 v{SA+2}, 0, v{SA+2}')
    bf16r(k, f'v{SA+2}', f'v{SA+2}', 'v10')
    k.e(f'v_add_f32 v{SA+2}, 0x3727c5ac, v{SA+2}')
    bf16r(k, f'v{SA+2}', f'v{SA+2}', 'v10')
    k.e(f'v_sqrt_f32 v{SA+2}, v{SA+2}')
    XE = 28
    k.e(f'v_cvt_pk_bf16_f32 v{XE}, -v{SA}, -v{SA}')
    k.e(f'v_cvt_pk_bf16_f32 v{XE+1}, v{SA+2}, v{SA+2}')
    k.e(f'v_mov_b32 v{XE+2}, v{XE}')
    k.e(f'v_mov_b32 v{XE+3}, v{XE+1}')
    k.e(f'v_lshlrev_b32 v{SA+2}, 16, v{XE+1}')
    RS = SA
    k.e(f'v_rcp_f32 v{RS}, v{SA+2}')
    ACC = 144
    U, Pp, Qq = 176, 184, 192
    k.e('s_mov_b32 s46, 0x00003f80')
    k.e('s_mov_b32 s47, 0x3f800000')
    k.e('v_lshrrev_b32 v10, 3, v1')
    k.e('v_xor_b32 v10, v10, v4')
    k.e('v_and_b32 v10, 1, v10')
    k.e('v_lshlrev_b32 v11, 7, v4')
    k.e('v_lshl_add_u32 v11, v5, 4, v11')
    k.e(f's_lshl_b32 s48, s{W}, 12')
    k.e('v_add_u32 v11, s48, v11')
    k.e('v_lshl_add_u32 v12, v10, 6, v11')
    k.e('v_xor_b32 v13, 64, v12')
    k.e('v_lshlrev_b32 v14, 4, v1')
    k.e(f's_lshl_b32 s48, s{W}, 11')
    k.e(f's_add_u32 s48, s48, {L_WQ}')
    k.e('v_add_u32 v14, s48, v14')

    def prep(c, i, seg, slot):
        w = wreg(c, i, seg)
        st = STR + 2 * (2 * c + i)
        A = ACC + 16 * slot
        k.wait(vm=max(twr[(c, i, seg)], tst[(c, i)]))
        for j in range(4):
            k.e(f'v_lshlrev_b32 v{U+2*j}, 16, v{w+j}')
            k.e(f'v_and_b32 v{U+2*j+1}, 0xffff0000, v{w+j}')
        for j in range(4):
            k.e(f'v_pk_mul_f32 {vr(Pp+2*j,2)}, {vr(U+2*j,2)}, {vr(st,2)} op_sel_hi:[1,0]')
        for j in range(4):
            k.e(f'v_pk_fma_f32 {vr(A+8+2*j,2)}, {vr(U+2*j,2)}, {vr(st,2)}, {vr(A+8+2*j,2)} op_sel:[0,1,0]')
        q = Qq + 4 * ((2 * c + i + seg) & 1)
        for j in range(4):
            k.e(f'v_cvt_pk_bf16_f32 v{q+j}, v{Pp+2*j}, v{Pp+2*j+1}')
        for j in range(4):
            k.e(f'v_dot2c_f32_bf16 v{A+2*j}, s46, v{q+j}')
            k.e(f'v_dot2c_f32_bf16 v{A+2*j+1}, s47, v{q+j}')
        if seg == 0:
            k.ds(f'ds_write_b128 v14, {vr(q,4)} offset:{(128*c+16*i)*64}')
        else:
            k.ds(f'ds_write_b128 v{11+seg}, {vr(q,4)} offset:{(128*c+16*i)*128}')

    def reduce_ext(seg, slot):
        A = ACC + 16 * slot
        for j in range(8):
            k.e(f'v_permlane32_swap_b32 v{A+j}, v{A+8+j}')
        for j in range(8):
            k.e(f'v_add_f32 v{A+j}, v{A+j}, v{A+8+j}')
        for j in range(4):
            k.e(f'v_permlane16_swap_b32 v{A+j}, v{A+4+j}')
        for j in range(4):
            k.e(f'v_add_f32 v{A+j}, v{A+j}, v{A+4+j}')
        for rot in (4, 8):
            for j in range(4):
                k.e(f'v_add_f32_dpp v{A+j}, v{A+j}, v{A+j} row_ror:{rot} row_mask:0xf bank_mask:0xf')
        H, Lo = A + 4, A + 6
        k.e(f'v_cvt_pk_bf16_f32 v{H}, v{A}, v{A+1}')
        k.e(f'v_cvt_pk_bf16_f32 v{H+1}, v{A+2}, v{A+3}')
        for j in range(2):
            k.e(f'v_lshlrev_b32 v{A+8+2*j}, 16, v{H+j}')
            k.e(f'v_and_b32 v{A+9+2*j}, 0xffff0000, v{H+j}')
        for j in range(4):
            k.e(f'v_sub_f32 v{A+j}, v{A+j}, v{A+8+j}')
        k.e(f'v_cvt_pk_bf16_f32 v{Lo}, v{A}, v{A+1}')
        k.e(f'v_cvt_pk_bf16_f32 v{Lo+1}, v{A+2}, v{A+3}')
        T = A + 8
        k.e(f'v_lshrrev_b32 v{T}, 5, v1')
        k.e(f'v_bfe_u32 v{T+1}, v1, 4, 1')
        k.e(f'v_lshlrev_b32 v{T+2}, 4, v5')
        k.e(f'v_lshl_add_u32 v{T+2}, v{T+1}, 3, v{T+2}')
        if seg == 0:
            k.e(f'v_lshl_add_u32 v{T+2}, v{T}, 7, v{T+2}')
            k.e(f's_lshl_b32 s48, s{W}, 8')
            k.e(f's_add_u32 s48, s48, {L_WQ+512*64}')
            k.e(f'v_add_u32 v{T+2}, s48, v{T+2}')
            k.ds(f'ds_write_b64 v{T+2}, {vr(H,2)}')
            k.ds(f'ds_write_b64 v{T+2}, {vr(Lo,2)} offset:64')
        else:
            k.e(f'v_lshl_add_u32 v{T+2}, v{T}, 8, v{T+2}')
            k.e(f's_lshl_b32 s48, s{W}, 9')
            k.e(f's_add_u32 s48, s48, {L_WKV+512*128}')
            k.e(f'v_add_u32 v{T+2}, s48, v{T+2}')
            k.e(f'v_xor_b32 v{T}, {seg-1}, v{T}')
            k.e(f'v_lshl_add_u32 v{T+3}, v{T}, 6, v{T+2}')
            k.e(f'v_xor_b32 v{T+2}, 64, v{T+3}')
            k.ds(f'ds_write_b64 v{T+3}, {vr(H,2)}')
            k.ds(f'ds_write_b64 v{T+2}, {vr(Lo,2)} offset:128')

    for j in range(32):
        k.e(f'v_mov_b32 v{ACC+j}, 0')
    for c in range(4):
        for i in range(2):
            prep(c, i, 1, 0)
            prep(c, i, 2, 1)
    reduce_ext(1, 0)
    reduce_ext(2, 1)
    for j in range(16):
        k.e(f'v_mov_b32 v{ACC+j}, 0')
    for c in range(4):
        for i in range(2):
            prep(c, i, 0, 0)
    reduce_ext(0, 0)
    AK, AV, AQ = 8, 10, 12
    k.e('v_lshrrev_b32 v14, 5, v1')
    k.e('v_bfe_u32 v15, v1, 2, 2')
    k.e('v_lshl_add_u32 v14, v14, 3, v15')
    k.e('v_lshrrev_b32 v13, 1, v15')
    k.e('v_xor_b32 v13, v13, v15')
    k.e('v_and_b32 v13, 1, v13')
    k.e('v_bfe_u32 v15, v1, 4, 1')
    k.e('v_and_b32 v2, 1, v1')
    k.e('v_lshlrev_b32 v2, 4, v2')
    k.e('v_bfe_u32 v3, v1, 1, 1')
    k.e('v_lshl_add_u32 v2, v3, 3, v2')
    k.e('v_lshl_add_u32 v2, v15, 5, v2')
    k.e('v_lshlrev_b32 v3, 3, v5')
    k.e('v_lshl_add_u32 v3, v15, 5, v3')
    k.e(f'v_lshl_add_u32 v{AK}, v14, 7, v2')
    k.e(f'v_lshl_add_u32 v{AK}, v13, 6, v{AK}')
    k.e(f'v_add_u32 v{AK+1}, 0x8000, v{AK}')
    k.e('v_xor_b32 v13, 1, v13')
    k.e(f'v_lshl_add_u32 v{AV}, v14, 7, v3')
    k.e(f'v_lshl_add_u32 v{AV}, v13, 6, v{AV}')
    k.e(f'v_add_u32 v{AV+1}, 0x8000, v{AV}')
    k.e(f'v_lshl_add_u32 v{AQ}, v14, 6, v2')
    k.e(f'v_add_u32 v{AQ}, {L_WQ}, v{AQ}')
    k.wait(vm=tphi)
    for j in range(4):
        k.e(f'v_lshl_or_b32 v{PHI+j}, v{PHI+4+j}, 16, v{PHI+j}')
    k.e('v_and_b32 v13, 4, v1')
    k.e('v_cmp_eq_u32 vcc, 0, v13')
    for j in range(4):
        k.e(f'v_cndmask_b32 v{PHI+4+j}, v{PHI+j}, 0, vcc')
    for j in range(4):
        k.e(f'v_cndmask_b32 v{PHI+j}, 0, v{PHI+j}, vcc')
    k.e(f's_mov_b32 s50, 0x{LOG2E:x}')
    k.e(f's_mov_b32 s51, 0x{LOG2E:x}')
    k.wait_all(vm=False)
    k.e('s_barrier')
    AccK, AccV, AccQ = 200, 216, 232
    FB = 32
    NST = 3

    def xfrag(s):
        return ar(4 * s, 4) if s < 32 else vr(XE, 4)

    def rd_kv(s):
        st = s % NST
        o = (s & 15) * 2048 if s < 32 else 16 * 2048
        hi = 1 if s >= 16 else 0
        t = None
        for t_ in range(2):
            k.ds(f'ds_read_b64_tr_b16 {vr(FB+8*st+2*t_,2)}, v{AK+hi} offset:{o+t_*512}')
        for t_ in range(2):
            t = k.ds(f'ds_read_b64_tr_b16 {vr(FB+8*st+4+2*t_,2)}, v{AV+hi} offset:{o+t_*512}')
        return t
    tk = {}
    for s in range(NST - 1):
        tk[s] = rd_kv(s)
    for s in range(33):
        if s + NST - 1 < 33:
            tk[s + NST - 1] = rd_kv(s + NST - 1)
        st = s % NST
        k.wait(lg=tk[s])
        ck = vr(AccK, 16) if s else '0'
        cv = vr(AccV, 16) if s else '0'
        k.e(f'v_mfma_f32_32x32x16_bf16 {vr(AccK,16)}, {vr(FB+8*st,4)}, {xfrag(s)}, {ck}')
        k.e(f'v_mfma_f32_32x32x16_bf16 {vr(AccV,16)}, {xfrag(s)}, {vr(FB+8*st+4,4)}, {cv}')
    KB = 64
    PK = 80
    E = 96
    PH = 128
    T8 = 144
    k.e('v_and_b32 v13, 31, v1')
    k.e('v_lshlrev_b32 v13, 2, v13')
    k.e(f's_lshl_b32 s48, s{W}, 7')
    k.e(f's_add_u32 s48, s48, {L_RB}')
    k.e('v_add_u32 v13, s48, v13')
    k.ds(f'ds_write_b32 v13, v{RS}')
    k.e('v_lshrrev_b32 v14, 5, v1')
    k.e('v_lshlrev_b32 v14, 4, v14')
    k.e('v_add_u32 v14, s48, v14')
    RR = 160
    k.wait_all(vm=False)
    for a in range(4):
        trr = k.ds(f'ds_read_b128 {vr(RR+4*a,4)}, v14 offset:{a*32}')

    def proj_softmax(Acc):
        for j in range(8):
            k.e(f'v_pk_mul_f32 {vr(Acc+2*j,2)}, {vr(Acc+2*j,2)}, {vr(RS,2)} op_sel_hi:[1,0]')
        for j in range(8):
            k.e(f'v_cvt_pk_bf16_f32 v{KB+j}, v{Acc+2*j}, v{Acc+2*j+1}')
        k.e(f'v_mfma_f32_32x32x16_bf16 {vr(PK,16)}, {vr(PHI,4)}, {vr(KB,4)}, 0')
        k.e(f'v_mfma_f32_32x32x16_bf16 {vr(PK,16)}, {vr(PHI+4,4)}, {vr(KB+4,4)}, {vr(PK,16)}')

    proj_softmax(AccK)
    VB = 72
    k.wait(lg=trr)
    for j in range(8):
        k.e(f'v_pk_mul_f32 {vr(AccV+2*j,2)}, {vr(AccV+2*j,2)}, {vr(RR+2*j,2)}')
    for j in range(8):
        k.e(f'v_cvt_pk_bf16_f32 v{VB+j}, v{AccV+2*j}, v{AccV+2*j+1}')
    k.e('v_lshlrev_b32 v13, 4, v1')
    k.e(f's_lshl_b32 s48, s{W}, 11')
    k.e(f's_add_u32 s48, s48, {L_VFR}')
    k.e('v_add_u32 v13, s48, v13')
    k.ds(f'ds_write_b128 v13, {vr(VB,4)}')
    k.ds(f'ds_write_b128 v13, {vr(VB+4,4)} offset:1024')
    softmax16(k, PK, E, PH, T8, 50)
    k.e('v_and_b32 v13, 31, v1')
    k.e('v_mul_u32_u24 v13, 80, v13')
    k.e('v_lshrrev_b32 v14, 5, v1')
    k.e('v_mul_u32_u24 v14, 2560, v14')
    k.e(f's_mul_i32 s48, s{W}, 5120')
    k.e(f's_add_u32 s48, s48, {L_PHK}')
    k.e('v_add3_u32 v13, v13, v14, s48')
    for j in range(4):
        k.ds(f'ds_write_b128 v13, {vr(PH+4*j,4)} offset:{16*j}')
    k.wait_all(vm=False)
    k.e('s_barrier')
    skipkv = k.newlabel('SKIPKV')
    k.e(f's_cmp_ge_u32 s{W}, 2')
    k.e(f's_cbranch_scc1 {skipkv}')
    k.e('v_and_b32 v13, 15, v1')
    k.e('v_and_b32 v14, 32, v1')
    k.e('v_add_u32 v13, v13, v14')
    k.e('v_lshlrev_b32 v13, 4, v13')
    k.e(f's_lshl_b32 s48, s{W}, 8')
    k.e(f's_add_u32 s48, s48, {L_VFR}')
    k.e('v_add_u32 v13, s48, v13')
    k.e('v_lshrrev_b32 v14, 5, v1')
    k.e('v_bfe_u32 v15, v1, 2, 2')
    k.e('v_lshl_add_u32 v14, v14, 2, v15')
    k.e('v_mul_u32_u24 v14, 80, v14')
    k.e(f's_mul_i32 s48, s{W}, 2560')
    k.e(f's_add_u32 s48, s48, {L_PHK}')
    k.e('v_add3_u32 v14, v14, v3, s48')
    k.e('v_and_b32 v15, 16, v1')
    k.e('v_cmp_eq_u32 vcc, 0, v15')
    k.e('v_mov_b32 v15, 0x3f803f80')
    KA, KBf = 32, 64
    tks = []
    for ww in range(4):
        for t_ in range(2):
            n = 2 * ww + t_
            k.ds(f'ds_read_b128 {vr(KA+4*n,4)}, v13 offset:{ww*2048+t_*1024}')
            k.ds(f'ds_read_b64_tr_b16 {vr(KBf+4*n,2)}, v14 offset:{ww*5120+t_*16*80}')
            tks.append(k.ds(f'ds_read_b64_tr_b16 {vr(KBf+4*n+2,2)}, v14 offset:{ww*5120+t_*16*80+8*80}'))
    DK = 96
    for n in range(8):
        k.wait(lg=tks[n])
        for j in range(4):
            k.e(f'v_cndmask_b32 v{KA+4*n+j}, v15, v{KA+4*n+j}, vcc')
        k.e(f'v_mfma_f32_32x32x16_bf16 {vr(DK,16)}, {vr(KA+4*n,4)}, {vr(KBf+4*n,4)}, {vr(DK,16) if n else 0}')
    k.e(f's_lshl_b32 s48, s{HP}, 4')
    k.e(f's_add_u32 s48, s48, s{MB}')
    k.e(f's_mul_i32 s48, s48, {KVP_STRIDE}')
    k.e(f's_mul_i32 s49, s{W}, 2304')
    k.e('s_add_u32 s48, s48, s49')
    k.e(f's_add_u32 s48, s48, {KVP}')
    k.e('v_lshlrev_b32 v13, 4, v1')
    k.e('v_lshlrev_b32 v14, 2, v1')
    k.vmem(f'buffer_store_dwordx4 {vr(DK,4)}, v13, s[24:27], s48 offen')
    k.vmem(f'buffer_store_dwordx4 {vr(DK+4,4)}, v13, s[24:27], s48 offen offset:1024')
    k.vmem(f'buffer_store_dword v{DK+8}, v14, s[24:27], s48 offen offset:2048')
    k.flush()
    k.label(skipkv)
    NSQ = 4

    def rd_q(s):
        st = s % NSQ
        t = None
        for t_ in range(2):
            t = k.ds(f'ds_read_b64_tr_b16 {vr(FB+4*st+2*t_,2)}, v{AQ} offset:{s*1024+t_*256}')
        return t
    k.lg_done = k.lg
    k.e('s_waitcnt lgkmcnt(0)')
    tq = {}
    for s in range(NSQ - 1):
        tq[s] = rd_q(s)
    for s in range(33):
        if s + NSQ - 1 < 33:
            tq[s + NSQ - 1] = rd_q(s + NSQ - 1)
        st = s % NSQ
        k.wait(lg=tq[s])
        k.e(f'v_mfma_f32_32x32x16_bf16 {vr(AccQ,16)}, {vr(FB+4*st,4)}, {xfrag(s)}, {vr(AccQ,16) if s else 0}')
    if debug == 'accq':
        PH = AccQ
    elif debug == 'stats':
        PH = 16
    elif debug == 'pk':
        proj_softmax(AccQ)
        PH = PK
    else:
        proj_softmax(AccQ)
        softmax16(k, PK, E, PH, T8, 50)
        for j in range(4):
            k.e(f'v_permlane32_swap_b32 v{PH+j}, v{PH+4+j}')
            k.e(f'v_permlane32_swap_b32 v{PH+8+j}, v{PH+12+j}')
    k.e('s_lshl_b32 s48, s2, 14')
    k.e(f's_lshl_b32 s49, s{W}, 12')
    k.e('s_add_u32 s48, s48, s49')
    k.e(f's_add_u32 s48, s48, {PHQ}')
    k.e('v_lshlrev_b32 v13, 4, v1')
    for q in range(4):
        k.vmem(f'buffer_store_dwordx4 {vr(PH+4*q,4)}, v13, s[24:27], s48 offen offset:{q*1024}')
    k.label(end)
    k.e('s_endpgm')
    return k, 256, 128, (256, 256, 131072)


if __name__ == '__main__':
    build([gen_k0(), gen_k1()], 'out.s')
    for d in ('accq', 'stats', 'pk'):
        build([gen_k0(), gen_k1(d)], f'out_{d}.s')
```

```python
from gen_k1 import *


def lane_setup(k, W):
    k.e('v_lshrrev_b32 v2, 6, v0')
    k.e('v_and_b32 v1, 63, v0')
    k.e(f'v_readfirstlane_b32 s{W}, v2')


def tr_cols(k, sig, nat, t):
    k.e(f'v_bfe_u32 v{t}, v1, 4, 1')
    if sig is not None:
        k.e(f'v_and_b32 v{sig}, 1, v1')
        k.e(f'v_lshlrev_b32 v{sig}, 4, v{sig}')
        k.e(f'v_lshl_add_u32 v{sig}, v{t}, 5, v{sig}')
        k.e(f'v_bfe_u32 v{t}, v1, 1, 1')
        k.e(f'v_lshl_add_u32 v{sig}, v{t}, 3, v{sig}')
        k.e(f'v_bfe_u32 v{t}, v1, 4, 1')
    if nat is not None:
        k.e(f'v_and_b32 v{nat}, 3, v1')
        k.e(f'v_lshlrev_b32 v{nat}, 3, v{nat}')
        k.e(f'v_lshl_add_u32 v{nat}, v{t}, 5, v{nat}')


def gen_ko():
    k = Kern('ko_kernel')
    end = k.newlabel('END')
    gemv = k.newlabel('GEMV')
    k.e('s_cmp_ge_u32 s2, 342')
    k.e(f's_cbranch_scc1 {end}')
    k.e('s_load_dwordx2 s[10:11], s[0:1], 96')
    k.e('s_load_dwordx4 s[4:7], s[0:1], 40')
    MB, HP, W = 28, 29, 30
    wg_decode(k, MB, HP)
    lane_setup(k, W)
    k.e('v_lshlrev_b32 v3, 4, v1')
    k.e('v_lshlrev_b32 v4, 2, v1')
    k.e('s_waitcnt lgkmcnt(0)')
    k.srd(24, 's10', 's11', WS_SIZE)
    k.e('s_cmp_ge_u32 s2, 256')
    k.e(f's_cbranch_scc1 {gemv}')
    k.e(f's_mul_i32 s31, s{HP}, {16*KVP_STRIDE}')
    k.e(f's_and_b32 s32, s{W}, 1')
    k.e('s_mul_i32 s33, s32, 2304')
    k.e('s_add_u32 s31, s31, s33')
    k.e(f's_add_u32 s31, s31, {KVP}')
    k.e(f's_lshr_b32 s34, s{W}, 1')
    k.e('s_lshl_b32 s33, s34, 10')
    k.e('s_add_u32 s33, s33, s31')
    PQ, PZ = 32, 96
    tp = []
    for p in range(16):
        k.vmem(f'buffer_load_dwordx4 {vr(PQ+4*p,4)}, v3, s[24:27], s33 offen')
        tp.append(k.vmem(f'buffer_load_dword v{PZ+p}, v4, s[24:27], s31 offen offset:2048'))
        if p < 15:
            k.e(f's_add_u32 s33, s33, {KVP_STRIDE}')
            k.e(f's_add_u32 s31, s31, {KVP_STRIDE}')
    PH = 112
    k.e('s_lshl_b32 s35, s2, 14')
    k.e(f's_lshl_b32 s36, s{W}, 12')
    k.e('s_add_u32 s35, s35, s36')
    k.e(f's_add_u32 s35, s35, {PHQ}')
    for q in range(4):
        tph = k.vmem(f'buffer_load_dwordx4 {vr(PH+4*q,4)}, v3, s[24:27], s35 offen offset:{q*1024}')
    k.e('v_and_b32 v5, 31, v1')
    k.e('v_lshlrev_b32 v5, 6, v5')
    k.e('v_lshrrev_b32 v6, 5, v1')
    k.e('v_lshl_add_u32 v5, v6, 4, v5')
    k.e('s_lshl_b32 s36, s32, 11')
    k.e('v_add_u32 v7, s36, v5')
    k.e('s_lshl_b32 s37, s34, 3')
    k.e('v_add_u32 v5, s37, v7')
    tr_cols(k, None, 8, 9)
    k.e('v_bfe_u32 v9, v1, 2, 2')
    k.e('v_lshl_add_u32 v9, v6, 3, v9')
    k.e('v_lshl_add_u32 v8, v9, 6, v8')
    for p in range(1, 16):
        k.wait(vm=tp[p])
        k.e(f'v_pk_add_f32 {vr(PQ,2)}, {vr(PQ,2)}, {vr(PQ+4*p,2)}')
        k.e(f'v_pk_add_f32 {vr(PQ+2,2)}, {vr(PQ+2,2)}, {vr(PQ+4*p+2,2)}')
        k.e(f'v_add_f32 v{PZ}, v{PZ}, v{PZ+p}')
    k.e(f'v_cvt_pk_bf16_f32 v12, v{PQ}, v{PQ+1}')
    k.e(f'v_cvt_pk_bf16_f32 v13, v{PQ+2}, v{PQ+3}')
    for j in range(4):
        k.e(f'v_cvt_pk_bf16_f32 v{16+j}, v{PZ}, v{PZ}')
    k.ds('ds_write_b64 v5, v[12:13]')
    k.ds('ds_write_b128 v7, v[16:19] offset:32')
    k.wait_all(vm=False)
    k.e('s_barrier')
    AF = 32
    ta = {}
    for h in range(2):
        for t in range(2):
            k.ds(f'ds_read_b64_tr_b16 {vr(AF+8*h+4*t,2)}, v8 offset:{h*2048+t*1024}')
            ta[(h, t)] = k.ds(f'ds_read_b64_tr_b16 {vr(AF+8*h+4*t+2,2)}, v8 offset:{h*2048+t*1024+256}')
    D = 64
    k.wait(vm=tph)
    for h in range(2):
        for t in range(2):
            k.wait(lg=ta[(h, t)])
            k.e(f'v_mfma_f32_32x32x16_bf16 {vr(D+16*h,16)}, {vr(AF+8*h+4*t,4)}, {vr(PH+8*t+4*h,4)}, {vr(D+16*h,16) if t else 0}')
    k.e(f's_lshl_b32 s35, s{MB}, 2')
    k.e(f's_add_u32 s35, s35, s{W}')
    k.e('s_lshl_b32 s35, s35, 5')
    k.e(f's_lshl_b32 s36, s{HP}, 1')
    k.e('s_add_u32 s35, s35, s36')
    k.e('s_lshl_b32 s35, s35, 10')
    k.e(f's_add_u32 s35, s35, {OBUF}')
    for h in range(2):
        d = D + 16 * h
        k.e(f'v_add_f32 v{d+8}, 0x358637bd, v{d+8}')
        k.e(f'v_rcp_f32 v{d+8}, v{d+8}')
        for j in range(4):
            k.e(f'v_pk_mul_f32 {vr(d+2*j,2)}, {vr(d+2*j,2)}, {vr(d+8,2)} op_sel_hi:[1,0]')
        for j in range(4):
            k.e(f'v_cvt_pk_bf16_f32 v{d+12+j}, v{d+2*j}, v{d+2*j+1}')
        k.vmem(f'buffer_store_dwordx4 {vr(d+12,4)}, v3, s[24:27], s35 offen offset:{h*1024}')
    k.e('s_endpgm')
    k.flush()
    k.label(gemv)
    k.e('s_sub_u32 s31, s2, 256')
    k.e('s_cmp_ge_u32 s31, 43')
    k.e('s_cselect_b32 s32, 1, 0')
    k.e('s_cselect_b32 s4, s6, s4')
    k.e('s_cselect_b32 s5, s7, s5')
    k.e('s_mul_i32 s33, s32, 43')
    k.e('s_sub_u32 s31, s31, s33')
    k.srd(16, 's4', 's5', 512 * 2752)
    k.e('v_lshrrev_b32 v1, 2, v0')
    k.e('v_and_b32 v2, 3, v0')
    k.e('v_mul_u32_u24 v3, 2752, v1')
    k.e('v_lshl_add_u32 v3, v2, 4, v3')
    k.e('v_lshlrev_b32 v4, 2, v1')
    k.e('s_lshl_b32 s33, s31, 6')
    k.e(f's_mov_b32 s34, {MODF+3*2048}')
    ts = []
    for i in range(8):
        k.vmem(f'buffer_load_dword v{8+i}, v4, s[24:27], s34 offen offset:{i*256}')
        ts.append(k.vmem(f'buffer_load_dword v{16+i}, v4, s[24:27], s34 offen offset:{2048+i*256}'))
    tw = []
    for i in range(8):
        tw.append(k.vmem(f'buffer_load_dwordx4 {vr(64+4*i,4)}, v3, s[16:19], s33 offen'))
        if i < 7:
            k.e(f's_add_u32 s33, s33, {64*2752}')
    for j in range(16):
        k.e(f'v_mov_b32 v{32+j}, 0')
    for i in range(8):
        k.wait(vm=tw[i])
        for j in range(4):
            w = 64 + 4 * i + j
            k.e(f'v_lshlrev_b32 v5, 16, v{w}')
            k.e(f'v_and_b32 v6, 0xffff0000, v{w}')
            k.e(f'v_fmac_f32 v{32+2*j}, v{16+i}, v5')
            k.e(f'v_fmac_f32 v{33+2*j}, v{16+i}, v6')
            k.e(f'v_fmac_f32 v{40+2*j}, v{8+i}, v5')
            k.e(f'v_fmac_f32 v{41+2*j}, v{8+i}, v6')
    k.e('v_lshlrev_b32 v5, 5, v0')
    k.ds('ds_write_b128 v5, v[32:35]')
    k.ds('ds_write_b128 v5, v[36:39] offset:16')
    k.ds('ds_write_b128 v5, v[40:43] offset:8192')
    k.ds('ds_write_b128 v5, v[44:47] offset:8208')
    k.e('v_and_b32 v6, 31, v0')
    k.e('v_lshrrev_b32 v7, 5, v0')
    k.e('v_lshlrev_b32 v7, 11, v7')
    k.e('v_lshl_add_u32 v7, v6, 2, v7')
    k.wait_all(vm=False)
    k.e('s_barrier')
    for i in range(16):
        k.ds(f'ds_read_b32 v{8+i}, v7 offset:{i*128}')
    k.wait_all(vm=False)
    for i in (1, 2, 4, 8):
        for j in range(0, 16, 2 * i):
            k.e(f'v_add_f32 v{8+j}, v{8+j}, v{8+j+i}')
    k.e('v_lshlrev_b32 v5, 2, v0')
    k.ds('ds_write_b32 v5, v8 offset:16384')
    k.wait_all(vm=False)
    k.e('s_barrier')
    k.e('v_cmp_gt_u32 vcc, 32, v0')
    k.e('s_and_saveexec_b64 s[36:37], vcc')
    k.e(f's_cbranch_execz {end}')
    for i in range(8):
        k.ds(f'ds_read_b32 v{8+i}, v5 offset:{16384+i*128}')
    k.wait_all(vm=False)
    for b in (8, 12):
        k.e(f'v_add_f32 v{b}, v{b}, v{b+1}')
        k.e(f'v_add_f32 v{b+2}, v{b+2}, v{b+3}')
        k.e(f'v_add_f32 v{b}, v{b}, v{b+2}')
    for n, b in enumerate((8, 12)):
        bf16r(k, f'v{b+1}', f'v{b}', f'v{b+2}')
        k.e(f'v_sub_f32 v{b}, v{b}, v{b+1}')
        k.e(f'v_cvt_pk_bf16_f32 v{20+n}, v{b+1}, v{b}')
    k.e('v_lshrrev_b32 v5, 4, v0')
    k.e('v_lshlrev_b32 v5, 8, v5')
    k.e('v_bfe_u32 v6, v0, 2, 1')
    k.e('v_lshl_add_u32 v5, v6, 6, v5')
    k.e('v_bfe_u32 v6, v0, 3, 1')
    k.e('v_lshl_add_u32 v5, v6, 5, v5')
    k.e('v_and_b32 v6, 3, v0')
    k.e('v_lshl_add_u32 v5, v6, 3, v5')
    k.e('s_lshl_b32 s33, s31, 9')
    k.e('s_lshl_b32 s34, s32, 7')
    k.e('s_add_u32 s33, s33, s34')
    k.e(f's_add_u32 s33, s33, {EXT8}')
    k.vmem('buffer_store_dwordx2 v[20:21], v5, s[24:27], s33 offen')
    k.label(end)
    k.e('s_endpgm')
    return k, 128, 0, (342, 256, 17408)


def stage_addr(k, dst, t1, t2, rowbytes):
    k.e(f'v_lshrrev_b32 v{t1}, 3, v1')
    k.e(f'v_lshrrev_b32 v{t2}, 4, v1')
    k.e(f'v_xor_b32 v{t2}, v{t2}, v{t1}')
    k.e(f'v_and_b32 v{t2}, 1, v{t2}')
    k.e(f'v_and_b32 v{dst}, 7, v1')
    k.e(f'v_lshlrev_b32 v{dst}, 4, v{dst}')
    k.e(f'v_lshlrev_b32 v{t2}, 6, v{t2}')
    k.e(f'v_xor_b32 v{dst}, v{dst}, v{t2}')
    k.e(f'v_mul_u32_u24 v{t1}, {rowbytes}, v{t1}')
    k.e(f'v_add_u32 v{dst}, v{dst}, v{t1}')


def tr_addr_128(k, a0, a1, sOwn, sBase, t):
    tr_cols(k, a0, None, t)
    k.e(f'v_bfe_u32 v{t}, v1, 2, 2')
    k.e(f'v_lshrrev_b32 v{a1}, 1, v{t}')
    k.e(f'v_xor_b32 v{a1}, v{a1}, v{t}')
    k.e(f'v_xor_b32 v{a1}, s{sOwn}, v{a1}')
    k.e(f'v_and_b32 v{a1}, 1, v{a1}')
    k.e(f'v_lshl_add_u32 v{a0}, v{a1}, 6, v{a0}')
    k.e(f'v_lshl_add_u32 v{a0}, v{t}, 7, v{a0}')
    k.e(f'v_lshrrev_b32 v{t}, 5, v1')
    k.e(f'v_lshl_add_u32 v{a0}, v{t}, 10, v{a0}')
    k.e(f'v_add_u32 v{a0}, s{sBase}, v{a0}')
    k.e(f'v_xor_b32 v{a1}, 64, v{a0}')


def xreduce(k, ACC, W, LRED, T, sT):
    for i in (1, 2, 3):
        k.e(f's_xor_b32 s{sT}, s{W}, {i}')
        k.e(f's_mul_i32 s{sT}, s{sT}, 12288')
        k.e(f's_add_u32 s{sT}, s{sT}, {LRED+(i-1)*4096}')
        k.e(f'v_add_u32 v{T}, s{sT}, v3')
        for q in range(4):
            k.ds(f'ds_write_b128 v{T}, {vr(ACC+16*i+4*q,4)} offset:{q*1024}')
    k.e(f's_mul_i32 s{sT}, s{W}, 12288')
    k.e(f's_add_u32 s{sT}, s{sT}, {LRED}')
    k.e(f'v_add_u32 v2, s{sT}, v3')
    k.wait_all(vm=False)
    k.e('s_barrier')
    tt = []
    for n in range(12):
        tt.append(k.ds(f'ds_read_b128 {vr(T+4*n,4)}, v2 offset:{n*1024}'))
    for n in range(12):
        k.wait(lg=tt[n])
        q = n & 3
        for j in range(2):
            k.e(f'v_pk_add_f32 {vr(ACC+4*q+2*j,2)}, {vr(ACC+4*q+2*j,2)}, {vr(T+4*n+2*j,2)}')


def gen_k2():
    k = Kern('k2_wo_kernel')
    end = k.newlabel('END')
    k.e('s_cmp_ge_u32 s2, 256')
    k.e(f's_cbranch_scc1 {end}')
    k.e('s_load_dwordx2 s[4:5], s[0:1], 0')
    k.e('s_load_dwordx2 s[6:7], s[0:1], 24')
    k.e('s_load_dwordx2 s[10:11], s[0:1], 96')
    MB, J, W = 28, 29, 30
    wg_decode(k, MB, J)
    lane_setup(k, W)
    k.e('v_lshlrev_b32 v3, 4, v1')
    stage_addr(k, 4, 5, 6, 1024)
    TH, CB, TBO, NBO = 31, 32, 33, 34
    k.e(f's_and_b32 s{TH}, s{J}, 1')
    k.e(f's_lshr_b32 s{CB}, s{J}, 1')
    k.e(f's_and_b32 s{TBO}, s{W}, 1')
    k.e(f's_lshr_b32 s{NBO}, s{W}, 1')
    k.e('s_waitcnt lgkmcnt(0)')
    k.srd(12, 's4', 's5', 2048 * 1024)
    k.srd(16, 's6', 's7', 512 * 1024)
    k.srd(24, 's10', 's11', WS_SIZE)
    k.e(f's_lshl_b32 s35, s{W}, 17')
    k.e(f's_lshl_b32 s36, s{CB}, 7')
    k.e('s_add_u32 s35, s35, s36')
    k.e(f's_lshl_b32 s37, s{W}, 14')
    k.e('s_mov_b32 m0, s37')
    k.e(f's_lshl_b32 s38, s{MB}, 2')
    k.e(f's_lshl_b32 s39, s{TH}, 1')
    k.e('s_add_u32 s38, s38, s39')
    k.e(f's_add_u32 s40, s38, s{TBO}')
    k.e('s_xor_b32 s41, s40, 1')
    for s_ in (40, 41):
        k.e(f's_lshl_b32 s{s_+2}, s{s_}, 15')
        k.e(f's_lshl_b32 s39, s{W}, 13')
        k.e(f's_add_u32 s{s_+2}, s{s_+2}, s39')
        k.e(f's_add_u32 s{s_+2}, s{s_+2}, {OBUF}')
    OF = 0
    tl = {}
    for s in range(8):
        for h in range(2):
            k.vmem('buffer_load_dwordx4 v4, s[16:19], s35 offen lds')
            k.e('s_add_u32 s35, s35, 8192')
            k.e('s_add_u32 m0, m0, 1024')
        if s == 4:
            k.e('s_add_u32 s42, s42, 4096')
            k.e('s_add_u32 s43, s43, 4096')
        for tb in range(2):
            tl[s] = k.vmem(f'buffer_load_dwordx4 {ar(OF+8*s+4*tb,4)}, v3, s[24:27], s{42+tb} offen offset:{(s&3)*1024}')
    XR, GAr, S2r = 96, 104, 120
    k.e('v_and_b32 v5, 31, v1')
    k.e('v_lshlrev_b32 v5, 10, v5')
    k.e('v_lshrrev_b32 v6, 5, v1')
    k.e('v_lshl_add_u32 v5, v6, 4, v5')
    k.e('s_lshl_b32 s44, s40, 15')
    k.e(f's_lshl_b32 s45, s{CB}, 1')
    k.e(f's_add_u32 s45, s45, s{NBO}')
    k.e('s_lshl_b32 s46, s45, 6')
    k.e('s_add_u32 s44, s44, s46')
    for q in range(2):
        k.vmem(f'buffer_load_dwordx4 {vr(XR+4*q,4)}, v5, s[12:15], s44 offen offset:{q*32}')
    k.e('v_lshlrev_b32 v7, 5, v6')
    k.e('s_lshl_b32 s46, s45, 7')
    k.e(f's_add_u32 s46, s46, {MODF+2*2048}')
    k.e(f's_add_u32 s47, s46, {2*2048}')
    for q in range(2):
        for h in range(2):
            k.vmem(f'buffer_load_dwordx4 {vr(GAr+8*q+4*h,4)}, v7, s[24:27], s46 offen offset:{q*64+h*16}')
            tep = k.vmem(f'buffer_load_dwordx4 {vr(S2r+8*q+4*h,4)}, v7, s[24:27], s47 offen offset:{q*64+h*16}')
    tr_addr_128(k, 8, 9, NBO, 37, 10)
    ACC = 32
    FB = 16
    for s in range(8):
        k.wait(vm=tl[s])
        st = s & 1
        tt = []
        for sa in range(2):
            k.ds(f'ds_read_b64_tr_b16 {vr(FB+8*st+4*sa,2)}, v{8+sa} offset:{s*2048}')
            tt.append(k.ds(f'ds_read_b64_tr_b16 {vr(FB+8*st+4*sa+2,2)}, v{8+sa} offset:{s*2048+512}'))
        for sa in range(2):
            k.wait(lg=tt[sa])
            for sb in range(2):
                a = ACC + 16 * (2 * sa + sb)
                k.e(f'v_mfma_f32_32x32x16_bf16 {vr(a,16)}, {vr(FB+8*st+4*sa,4)}, {ar(OF+8*s+4*sb,4)}, {vr(a,16) if s else 0}')
    xreduce(k, ACC, W, 65536, 136, 48)
    k.wait(vm=tep)
    X = 48
    for j in range(8):
        k.e(f'v_lshlrev_b32 v{X+2*j}, 16, v{XR+j}')
        k.e(f'v_and_b32 v{X+2*j+1}, 0xffff0000, v{XR+j}')
    for j in range(8):
        k.e(f'v_pk_fma_f32 {vr(ACC+2*j,2)}, {vr(ACC+2*j,2)}, {vr(GAr+2*j,2)}, {vr(X+2*j,2)}')
    k.e('s_lshl_b32 s48, s2, 14')
    k.e(f's_lshl_b32 s49, s{W}, 12')
    k.e('s_add_u32 s48, s48, s49')
    k.e(f's_add_u32 s48, s48, {X1K}')
    for q in range(4):
        k.vmem(f'buffer_store_dwordx4 {vr(ACC+4*q,4)}, v3, s[24:27], s48 offen offset:{q*1024}')
    for j in range(8):
        k.e(f'v_pk_mul_f32 {vr(X+2*j,2)}, {vr(ACC+2*j,2)}, {vr(S2r+2*j,2)}')
    for j in range(8):
        k.e(f'v_cvt_pk_bf16_f32 v{64+j}, v{X+2*j}, v{X+2*j+1}')
    k.e('s_lshl_b32 s48, s40, 15')
    k.e('s_lshl_b32 s49, s45, 11')
    k.e('s_add_u32 s48, s48, s49')
    k.e(f's_add_u32 s48, s48, {X1S}')
    for q in range(2):
        k.vmem(f'buffer_store_dwordx4 {vr(64+4*q,4)}, v3, s[24:27], s48 offen offset:{q*1024}')
    k.e(f'v_pk_add_f32 v[72:73], {vr(ACC,2)}, {vr(ACC+2,2)}')
    k.e(f'v_pk_mul_f32 v[74:75], {vr(ACC,2)}, {vr(ACC,2)}')
    for j in range(1, 8):
        if j >= 2:
            k.e(f'v_pk_add_f32 v[72:73], v[72:73], {vr(ACC+2*j,2)}')
        k.e(f'v_pk_fma_f32 v[74:75], {vr(ACC+2*j,2)}, {vr(ACC+2*j,2)}, v[74:75]')
    k.e('v_add_f32 v72, v72, v73')
    k.e('v_add_f32 v74, v74, v75')
    k.e('v_permlane32_swap_b32 v72, v74')
    k.e('v_add_f32 v72, v72, v74')
    k.e('v_and_b32 v5, 31, v1')
    k.e('v_lshlrev_b32 v5, 2, v5')
    k.e('v_lshl_add_u32 v5, v6, 13, v5')
    k.e('s_lshl_b32 s48, s45, 14')
    k.e('s_lshl_b32 s49, s40, 7')
    k.e('s_add_u32 s48, s48, s49')
    k.e(f's_add_u32 s48, s48, {ST2}')
    k.vmem('buffer_store_dword v72, v5, s[24:27], s48 offen')
    k.label(end)
    k.e('s_endpgm')
    return k, 184, 64, (256, 256, 65536 + 49152)


if __name__ == '__main__':
    build([gen_k0(), gen_k1(), gen_ko(), gen_k2()], 'out.s')
```

```python
from gen_rest import *

UOFF = 24 * 3072 + 128


def ln_finalize(k, S1, S2, XE, R, t, half_zero):
    k.e(f'v_mul_f32 v{S1}, 0x3b000000, v{S1}')
    k.e(f'v_mul_f32 v{S2}, 0x3b000000, v{S2}')
    k.e(f'v_fma_f32 v{S2}, -v{S1}, v{S1}, v{S2}')
    k.e(f'v_max_f32 v{S2}, 0, v{S2}')
    bf16r(k, f'v{S2}', f'v{S2}', f'v{t}')
    k.e(f'v_add_f32 v{S2}, 0x3727c5ac, v{S2}')
    bf16r(k, f'v{S2}', f'v{S2}', f'v{t}')
    k.e(f'v_sqrt_f32 v{S2}, v{S2}')
    k.e(f'v_cvt_pk_bf16_f32 v{XE}, -v{S1}, -v{S1}')
    k.e(f'v_cvt_pk_bf16_f32 v{XE+1}, v{S2}, v{S2}')
    k.e(f'v_lshlrev_b32 v{S2}, 16, v{XE+1}')
    k.e(f'v_rcp_f32 v{R}, v{S2}')
    k.e('v_cmp_gt_u32 vcc, 32, v1')
    k.e(f'v_mov_b32 v{XE+2}, 0')
    k.e(f'v_mov_b32 v{XE+3}, 0')
    k.e(f'v_cndmask_b32 v{XE}, 0, v{XE}, vcc')
    k.e(f'v_cndmask_b32 v{XE+1}, 0, v{XE+1}, vcc')


def gen_k3():
    k = Kern('k3_gu_kernel')
    end = k.newlabel('END')
    k.e('s_cmp_ge_u32 s2, 256')
    k.e(f's_cbranch_scc1 {end}')
    k.e('s_load_dwordx4 s[4:7], s[0:1], 40')
    k.e('s_load_dwordx2 s[10:11], s[0:1], 96')
    MB, J, W = 28, 29, 30
    wg_decode(k, MB, J)
    lane_setup(k, W)
    k.e('v_lshlrev_b32 v3, 4, v1')
    k.e('s_mov_b32 s31, 10923')
    for m_ in range(3):
        k.e(f'v_add_u32 v7, {64*m_}, v1')
        k.e('v_mul_u32_u24 v8, s31, v7')
        k.e('v_lshrrev_b32 v8, 16, v8')
        k.e('v_mul_u32_u24 v9, 6, v8')
        k.e('v_sub_u32 v9, v7, v9')
        k.e('v_mul_u32_u24 v8, 2752, v8')
        k.e(f'v_lshl_add_u32 v{4+m_}, v9, 4, v8')
    ST = 31
    k.e(f's_mul_i32 s{ST}, s{J}, {16*21846}')
    k.e(f's_lshr_b32 s{ST}, s{ST}, 16')
    k.e('s_waitcnt lgkmcnt(0)')
    k.srd(12, 's4', 's5', 512 * 2752)
    k.srd(16, 's6', 's7', 512 * 2752)
    k.srd(24, 's10', 's11', WS_SIZE)
    k.e(f's_mul_i32 s32, s{W}, {32*2752}')
    k.e(f's_lshl_b32 s33, s{ST}, 5')
    k.e('s_add_u32 s32, s32, s33')
    k.e(f's_mul_i32 s33, s{W}, 3072')
    TB = 34
    k.e(f's_lshl_b32 s{TB}, s{MB}, 2')
    k.e(f's_add_u32 s{TB}, s{TB}, s{W}')
    k.e(f's_lshl_b32 s35, s{TB}, 15')
    k.e(f's_add_u32 s35, s35, {X1S}')

    def slot_of(p, c):
        if p == 0:
            return 4 * c
        return (16, 20, 0, 4)[c]

    def dma(p, c):
        t = None
        k.e(f's_add_u32 s36, s32, {c*128*2752+p*96}')
        for u in range(2):
            for m_ in range(3):
                k.e(f's_add_u32 m0, s33, {slot_of(p,c)*3072+u*UOFF+m_*1024}')
                t = k.vmem(f'buffer_load_dwordx4 v{4+m_}, s[{12+4*u}:{15+4*u}], s36 offen lds')
        return t

    def act(c):
        t = None
        for s8 in range(8):
            if (s8 & 3) == 0:
                k.e(f's_add_u32 s37, s35, {(8*c+s8)*1024}')
            t = k.vmem(f'buffer_load_dwordx4 {ar(4*(8*c+s8),4)}, v3, s[24:27], s37 offen offset:{(s8&3)*1024}')
        return t
    td = {}
    ta = {}
    td[(0, 0)] = dma(0, 0)
    ta[0] = act(0)
    SV = 96
    k.e('v_and_b32 v7, 31, v1')
    k.e('v_lshlrev_b32 v8, 3, v7')
    k.e('v_lshlrev_b32 v7, 2, v7')
    k.e('v_lshrrev_b32 v9, 5, v1')
    k.e('v_lshl_add_u32 v7, v9, 13, v7')
    k.e(f's_lshl_b32 s38, s{TB}, 7')
    k.e(f's_add_u32 s38, s38, {ST2}')
    for b in range(16):
        tst = k.vmem(f'buffer_load_dword v{SV+b}, v7, s[24:27], s38 offen')
        if b < 15:
            k.e('s_add_u32 s38, s38, 16384')
    EX = 112
    k.e(f's_lshl_b32 s38, s{ST}, 8')
    k.e(f's_add_u32 s38, s38, {EXT8}')
    for b in range(6):
        tex = k.vmem(f'buffer_load_dwordx2 {vr(EX+4*b,2)}, v8, s[24:27], s38 offen offset:{b*256}')
        k.e(f'v_mov_b32 v{EX+4*b+2}, 0')
        k.e(f'v_mov_b32 v{EX+4*b+3}, 0')
    td[(0, 1)] = dma(0, 1)
    ta[1] = act(1)
    td[(0, 2)] = dma(0, 2)
    k.e('v_and_b32 v10, 1, v1')
    k.e('v_lshlrev_b32 v10, 4, v10')
    k.e('v_bfe_u32 v12, v1, 1, 1')
    k.e('v_lshl_add_u32 v10, v12, 3, v10')
    k.e('v_bfe_u32 v12, v1, 2, 2')
    k.e('v_lshl_add_u32 v12, v9, 3, v12')
    k.e('v_mul_u32_u24 v12, 96, v12')
    k.e('v_add_u32 v10, v10, v12')
    k.e('v_bfe_u32 v12, v1, 4, 1')
    k.e(f'v_mul_u32_u24 v12, {UOFF}, v12')
    k.e('v_add_u32 v10, v10, v12')
    k.e('v_add_u32 v11, 0xc000, v10')
    ACC = 144
    FB = 16
    NST = 3
    XE, R2 = 136, 140

    def rd(p, s):
        st = s % NST
        slot = slot_of(p, s >> 3) + ((s >> 1) & 3)
        o = slot * 3072 + (s & 1) * 1536
        a = 10
        if slot >= 16:
            o -= 49152
            a = 11
        ts = []
        for b in range(3):
            k.ds(f'ds_read_b64_tr_b16 {vr(FB+12*st+4*b,2)}, v{a} offset:{o+b*32}')
            ts.append(k.ds(f'ds_read_b64_tr_b16 {vr(FB+12*st+4*b+2,2)}, v{a} offset:{o+b*32+384}'))
        return ts

    later = {
        (0, 0): lambda: (ta.__setitem__(2, act(2)), td.__setitem__((0, 3), dma(0, 3)), ta.__setitem__(3, act(3))),
        (0, 1): lambda: (td.__setitem__((1, 0), dma(1, 0)), td.__setitem__((1, 1), dma(1, 1)), td.__setitem__((1, 2), dma(1, 2))),
        (0, 2): lambda: (td.__setitem__((1, 3), dma(1, 3)),),
    }
    for p in range(2):
        A = ACC + 48 * p
        for c in range(4):
            k.wait(vm=td[(p, c)])
            k.wait_all(vm=False)
            k.e('s_barrier')
            if (p, c) in later:
                later[(p, c)]()
            tr = {}
            for s in range(8 * c, 8 * c + NST - 1):
                tr[s] = rd(p, s)
            if p == 0:
                k.wait(vm=ta[c])
            for s in range(8 * c, 8 * c + 8):
                if s + NST - 1 < 8 * c + 8:
                    tr[s + NST - 1] = rd(p, s + NST - 1)
                st = s % NST
                for b in range(3):
                    k.wait(lg=tr[s][b])
                    a = A + 16 * b
                    k.e(f'v_mfma_f32_32x32x16_bf16 {vr(a,16)}, {vr(FB+12*st+4*b,4)}, {ar(4*s,4)}, {vr(a,16) if s else 0}')
            if p == 0 and c == 0:
                k.wait(vm=tex)
                for i in (1, 2, 4, 8):
                    for j in range(0, 16, 2 * i):
                        k.e(f'v_add_f32 v{SV+j}, v{SV+j}, v{SV+j+i}')
                k.e(f'v_mov_b32 v{SV+1}, v{SV}')
                k.e(f'v_permlane32_swap_b32 v{SV}, v{SV+1}')
                ln_finalize(k, SV, SV + 1, XE, R2, SV + 2, True)
                k.e(f'v_mul_f32 v{R2}, v{R2}, v{R2}')
        for b in range(3):
            a = A + 16 * b
            k.e(f'v_mfma_f32_32x32x16_bf16 {vr(a,16)}, {vr(EX+4*(3*p+b),4)}, {vr(XE,4)}, {vr(a,16)}')
        k.e(f's_mul_i32 s38, s{TB}, 86')
        k.e(f's_add_u32 s38, s38, s{ST}')
        k.e('s_lshl_b32 s38, s38, 10')
        k.e(f's_add_u32 s38, s38, {HH+p*3072}')
        for b in range(3):
            a = A + 16 * b
            for j in range(4):
                k.e(f'v_pk_mul_f32 {vr(a+2*j,2)}, {vr(a+2*j,2)}, {vr(a+8+2*j,2)}')
            for j in range(4):
                k.e(f'v_pk_mul_f32 {vr(a+2*j,2)}, {vr(a+2*j,2)}, {vr(R2,2)} op_sel_hi:[1,0]')
            for j in range(4):
                k.e(f'v_cvt_pk_bf16_f32 v{a+8+j}, v{a+2*j}, v{a+2*j+1}')
            k.vmem(f'buffer_store_dwordx4 {vr(a+8,4)}, v3, s[24:27], s38 offen offset:{b*1024}')
    k.label(end)
    k.e('s_endpgm')
    return k, 240, 128, (256, 256, 2 * 24 * 3072 + 128)


def gen_k4():
    k = Kern('k4_down_kernel')
    end = k.newlabel('END')
    k.e('s_cmp_ge_u32 s2, 256')
    k.e(f's_cbranch_scc1 {end}')
    k.e('s_load_dwordx2 s[6:7], s[0:1], 56')
    k.e('s_load_dwordx2 s[4:5], s[0:1], 80')
    k.e('s_load_dwordx2 s[10:11], s[0:1], 96')
    MB, J, W = 28, 29, 30
    wg_decode(k, MB, J)
    lane_setup(k, W)
    k.e('v_lshlrev_b32 v3, 4, v1')
    stage_addr(k, 4, 5, 6, 1024)
    TH, CB, TBO, NBO, KS0 = 31, 32, 33, 34, 50
    k.e(f's_and_b32 s{TH}, s{J}, 1')
    k.e(f's_lshr_b32 s{CB}, s{J}, 1')
    k.e(f's_and_b32 s{TBO}, s{W}, 1')
    k.e(f's_lshr_b32 s{NBO}, s{W}, 1')
    k.e(f's_mul_i32 s{KS0}, s{W}, 22')
    k.e(f's_cmp_eq_u32 s{W}, 3')
    k.e(f's_cselect_b32 s{KS0}, 65, s{KS0}')
    k.e('s_waitcnt lgkmcnt(0)')
    k.srd(12, 's4', 's5', 2048 * 1024)
    k.srd(16, 's6', 's7', 1376 * 1024)
    k.srd(24, 's10', 's11', WS_SIZE)
    k.e(f's_lshl_b32 s35, s{KS0}, 14')
    k.e(f's_lshl_b32 s36, s{CB}, 7')
    k.e('s_add_u32 s35, s35, s36')
    k.e(f's_lshl_b32 s37, s{W}, 15')
    k.e(f's_lshl_b32 s38, s{MB}, 2')
    k.e(f's_lshl_b32 s39, s{TH}, 1')
    k.e('s_add_u32 s38, s38, s39')
    k.e(f's_add_u32 s40, s38, s{TBO}')
    k.e('s_xor_b32 s41, s40, 1')
    for s_ in (40, 41):
        k.e(f's_mul_i32 s{s_+2}, s{s_}, 86')
        k.e(f's_add_u32 s{s_+2}, s{s_+2}, s{KS0}')
        k.e(f's_lshl_b32 s{s_+2}, s{s_+2}, 10')
        k.e(f's_add_u32 s{s_+2}, s{s_+2}, {HH}')
    NK = 22
    RING = 16

    def dma(s):
        t = None
        for h in range(2):
            k.e(f's_add_u32 m0, s37, {(s%RING)*2048+h*1024}')
            t = k.vmem('buffer_load_dwordx4 v4, s[16:19], s35 offen lds')
            k.e('s_add_u32 s35, s35, 8192')
        return t

    def act(s):
        t = None
        if s and (s & 3) == 0:
            k.e('s_add_u32 s42, s42, 4096')
            k.e('s_add_u32 s43, s43, 4096')
        if s == NK - 1:
            k.e(f's_cmp_ge_u32 s{W}, 2')
            k.e(f's_cselect_b32 s42, 0x7f000000, s42')
            k.e(f's_cselect_b32 s43, 0x7f000000, s43')
        for tb in range(2):
            t = k.vmem(f'buffer_load_dwordx4 {ar(8*s+4*tb,4)}, v3, s[24:27], s{42+tb} offen offset:{(s&3)*1024}')
        return t
    tl = {}
    PRE = 14
    for s in range(PRE):
        dma(s)
        tl[s] = act(s)
    tr_addr_128(k, 8, 9, NBO, 37, 10)
    ACC = 32
    FB = 16
    X1r, GBr = 96, 112
    for s in range(NK):
        k.wait(vm=tl[s])
        st = s & 1
        tt = []
        for sa in range(2):
            k.ds(f'ds_read_b64_tr_b16 {vr(FB+8*st+4*sa,2)}, v{8+sa} offset:{(s%RING)*2048}')
            tt.append(k.ds(f'ds_read_b64_tr_b16 {vr(FB+8*st+4*sa+2,2)}, v{8+sa} offset:{(s%RING)*2048+512}'))
        n = s + PRE
        if n < NK:
            dma(n)
            tl[n] = act(n)
        if n == NK:
            k.e('s_lshl_b32 s48, s2, 14')
            k.e(f's_lshl_b32 s49, s{W}, 12')
            k.e('s_add_u32 s48, s48, s49')
            k.e(f's_add_u32 s48, s48, {X1K}')
            for q in range(4):
                k.vmem(f'buffer_load_dwordx4 {vr(X1r+4*q,4)}, v3, s[24:27], s48 offen offset:{q*1024}')
            k.e('v_lshrrev_b32 v6, 5, v1')
            k.e('v_lshlrev_b32 v7, 5, v6')
            k.e(f's_lshl_b32 s45, s{CB}, 1')
            k.e(f's_add_u32 s45, s45, s{NBO}')
            k.e('s_lshl_b32 s46, s45, 7')
            k.e(f's_add_u32 s46, s46, {MODF+5*2048}')
            for q in range(2):
                for h in range(2):
                    tep = k.vmem(f'buffer_load_dwordx4 {vr(GBr+8*q+4*h,4)}, v7, s[24:27], s46 offen offset:{q*64+h*16}')
        for sa in range(2):
            k.wait(lg=tt[sa])
            for sb in range(2):
                a = ACC + 16 * (2 * sa + sb)
                k.e(f'v_mfma_f32_32x32x16_bf16 {vr(a,16)}, {vr(FB+8*st+4*sa,4)}, {ar(8*s+4*sb,4)}, {vr(a,16) if s else 0}')
    k.e('s_barrier')
    xreduce(k, ACC, W, 0, 136, 48)
    k.wait(vm=tep)
    for j in range(8):
        k.e(f'v_pk_fma_f32 {vr(ACC+2*j,2)}, {vr(ACC+2*j,2)}, {vr(GBr+2*j,2)}, {vr(X1r+2*j,2)}')
    for j in range(8):
        k.e(f'v_cvt_pk_bf16_f32 v{64+j}, v{ACC+2*j}, v{ACC+2*j+1}')
    k.e('v_and_b32 v5, 31, v1')
    k.e('v_lshlrev_b32 v5, 10, v5')
    k.e('v_lshl_add_u32 v5, v6, 4, v5')
    k.e('s_lshl_b32 s44, s40, 15')
    k.e('s_lshl_b32 s46, s45, 6')
    k.e('s_add_u32 s44, s44, s46')
    for q in range(2):
        k.vmem(f'buffer_store_dwordx4 {vr(64+4*q,4)}, v5, s[12:15], s44 offen offset:{q*32}')
    k.label(end)
    k.e('s_endpgm')
    return k, 184, 176, (256, 256, 131072)


if __name__ == '__main__':
    build([gen_k0(), gen_k1(), gen_ko(), gen_k2(), gen_k3(), gen_k4()], 'out.s')
```

```python
from gen_k34 import *
def gen_nop():
    k = Kern('nop_kernel')
    k.e('s_endpgm')
    return k, 8, 0, (256, 256, 0)
base = [gen_k0(), gen_k1(), gen_ko(), gen_k2(), gen_k3(), gen_k4()]
build(base + [gen_nop()], 'cal1.s')
s = open('cal1.s').read()
line = '; @launch kernel=nop_kernel grid=(256,1,1) block=(256,1,1) lds=0\n'
open('cal4.s', 'w').write(s.replace(line, line*4))
open('cal8.s', 'w').write(s.replace(line, line*8))
```

```python
import re

TRANS = ('v_exp_f32', 'v_log_f32', 'v_rcp_f32', 'v_rsq_f32', 'v_sqrt_f32', 'v_sin_f32', 'v_cos_f32',
         'v_rcp_iflag_f32')

_reg_re = re.compile(r'\b([vas])(\d+)\b|\b([vas])\[(\d+):(\d+)\]|\b(vcc|exec|m0|scc)\b')


def regs_of(op):
    out = []
    for m in _reg_re.finditer(op):
        if m.group(1):
            out.append(m.group(1) + m.group(2))
        elif m.group(3):
            for i in range(int(m.group(4)), int(m.group(5)) + 1):
                out.append(m.group(3) + str(i))
        else:
            out.append(m.group(6))
    return out


def split_ops(s):
    ops, depth, cur = [], 0, ''
    for ch in s:
        if ch in '[(':
            depth += 1
        if ch in '])':
            depth -= 1
        if ch == ',' and depth == 0:
            ops.append(cur.strip())
            cur = ''
        else:
            cur += ch
    if cur.strip():
        ops.append(cur.strip())
    return ops


class Ins:
    def __init__(self, text):
        self.text = text
        t = text.split(';')[0].strip()
        self.label = t.endswith(':')
        self.directive = t.startswith('.')
        self.mn = ''
        self.w, self.r = [], []
        self.cls = 'none'
        self.srcC = []
        self.srcAB = []
        self.storedata = []
        self.dpp = False
        self.passes = 0
        if self.label or self.directive or not t:
            return
        parts = t.split(None, 1)
        mn = parts[0]
        self.mn = mn
        rest = parts[1] if len(parts) > 1 else ''
        ops = split_ops(rest)
        mods = ''
        if ops:
            last = ops[-1].split(None, 1)
            if len(last) > 1 and not last[0].endswith('('):
                ops[-1] = last[0]
                mods = last[1]
        self.mods = mods
        R = [regs_of(o) for o in ops]
        base = re.sub(r'_(e32|e64|dpp|sdwa)$', '', mn)
        self.base = base
        if mn.startswith('v_mfma'):
            self.cls = 'mfma'
            self.passes = 8 if '32x32x16' in mn else 4 if '16x16x32' in mn else 16
            self.w = R[0]
            self.srcAB = R[1] + R[2]
            self.srcC = R[3] if len(R) > 3 else []
            self.r = self.srcAB + self.srcC
        elif mn.startswith('v_'):
            self.cls = 'valu'
            self.dpp = mn.endswith('_dpp') or 'row_' in mods or 'quad_perm' in mods
            if base.startswith('v_cmpx'):
                self.w = R[0] + ['exec']
                self.r = sum(R[1:], [])
            elif base.startswith('v_cmp'):
                self.w = R[0]
                self.r = sum(R[1:], [])
            elif base.startswith('v_permlane'):
                self.w = R[0] + R[1]
                self.r = R[0] + R[1]
            elif base in ('v_add_co_u32', 'v_sub_co_u32', 'v_addc_co_u32', 'v_subb_co_u32', 'v_mad_u64_u32', 'v_div_scale_f32'):
                self.w = R[0] + R[1]
                self.r = sum(R[2:], [])
            elif base == 'v_nop':
                pass
            else:
                self.w = R[0]
                self.r = sum(R[1:], [])
                if base in ('v_fmac_f32', 'v_dot2c_f32_bf16', 'v_pk_fmac_f16', 'v_writelane_b32') or self.dpp:
                    self.r = self.r + R[0]
                if base == 'v_cndmask_b32' and len(R) == 3:
                    self.r = self.r + ['vcc']
        elif mn.startswith('buffer_') or mn.startswith('global_'):
            self.cls = 'vmem'
            lds = bool(re.search(r'\blds\b', mods)) or 'load_lds' in mn
            self.lds = lds
            if mn in ('buffer_inv', 'buffer_wbl2'):
                pass
            elif 'load' in mn and not lds:
                self.w = R[0]
                self.r = sum(R[1:], [])
                if 'd16' in mn:
                    self.r = self.r + R[0]
            elif lds:
                self.r = sum(R, []) + ['m0']
            else:
                self.r = sum(R, [])
                data = R[0] if mn.startswith('buffer_') else R[1]
                if 'x4' in mn or 'x3' in mn:
                    self.storedata = data
                if 'atomic' in mn and 'sc0' in mods:
                    self.w = data
        elif mn.startswith('ds_'):
            self.cls = 'ds'
            if 'read' in mn or 'permute' in mn or 'swizzle' in mn:
                self.w = R[0]
                self.r = sum(R[1:], [])
            else:
                self.r = sum(R, [])
        elif mn.startswith('s_load') or mn.startswith('s_mem') or mn.startswith('s_buffer_load'):
            self.cls = 'smem'
            self.w = R[0]
            self.r = sum(R[1:], [])
        elif mn.startswith('s_'):
            self.cls = 'salu'
            if mn.startswith('s_cmp') or mn.startswith('s_cbranch') or mn in (
                    's_branch', 's_waitcnt', 's_barrier', 's_nop', 's_endpgm', 's_sleep', 's_setprio', 's_bitcmp0_b32', 's_bitcmp1_b32'):
                self.r = sum(R, [])
            else:
                self.w = R[0] if R else []
                self.r = sum(R[1:], [])
                if 'saveexec' in mn:
                    self.w = self.w + ['exec']
        else:
            raise ValueError('unknown instruction: ' + text)

    def states(self):
        if self.label or self.directive or not self.mn:
            return 0
        if self.mn == 's_nop':
            return int(self.text.split(';')[0].split()[1], 0) + 1
        return 1


def isv(r):
    return r[0] in 'va' and r not in ('vcc',)


def iss(r):
    return (r[0] == 's' and r != 'scc') or r == 'vcc'


def need(prod, cons):
    n = 0
    pw = set(prod.w)
    cr = set(cons.r)
    cw = set(cons.w)
    if prod.cls == 'valu':
        sw = {r for r in pw if iss(r)}
        vw = {r for r in pw if isv(r)}
        if sw:
            if cons.cls == 'vmem' and sw & cr:
                n = max(n, 5)
            if cons.cls in ('valu',) and sw & cr:
                n = max(n, 4 if cons.base in ('v_readlane_b32', 'v_writelane_b32') else 2)
            if cons.cls == 'valu' and cons.base == 'v_div_fmas_f32' and 'vcc' in sw:
                n = max(n, 4)
            if cons.cls in ('salu', 'smem', 'ds') and sw & cr:
                n = max(n, 1)
        if vw:
            if cons.cls == 'valu':
                if cons.dpp and vw & cr:
                    n = max(n, 2)
                if cons.base.startswith('v_permlane') and vw & cr:
                    n = max(n, 2)
                if cons.base in ('v_readlane_b32', 'v_readfirstlane_b32') and vw & cr:
                    n = max(n, 1)
                if prod.base in TRANS and cons.base not in TRANS and vw & (cr | cw):
                    n = max(n, 1)
                if prod.base in TRANS and cons.base in TRANS and vw & cr:
                    n = max(n, 1)
                if prod.base.startswith('v_dot'):
                    if cons.base == prod.base:
                        ab = set()
                        ops = split_ops(cons.text.split(';')[0].strip().split(None, 1)[1])
                        for o in ops[1:3]:
                            ab |= set(regs_of(o))
                        if vw & ab:
                            n = max(n, 3)
                    elif vw & (cr | cw):
                        n = max(n, 3)
            if cons.cls == 'mfma' and vw & cr:
                n = max(n, 3 if prod.base.startswith('v_dot') else 2)
            if prod.base.startswith('v_dot') and cons.cls in ('vmem', 'ds') and vw & cr:
                n = max(n, 3)
            if prod.base in TRANS and cons.cls in ('vmem', 'ds') and vw & cr:
                n = max(n, 1)
        if 'exec' in pw:
            if cons.cls == 'mfma':
                n = max(n, 4)
            if cons.cls == 'valu' and cons.dpp:
                n = max(n, 5)
            if cons.cls == 'valu' and (cons.base.startswith('v_permlane') or cons.base in (
                    'v_readlane_b32', 'v_readfirstlane_b32', 'v_writelane_b32')):
                n = max(n, 4)
            if cons.cls == 'valu' and 'exec' in cr:
                n = max(n, 2)
    if prod.cls == 'salu' and 'm0' in pw:
        if (cons.cls == 'vmem' and getattr(cons, 'lds', False)) or 'addtid' in cons.mn or 'movrel' in cons.mn:
            n = max(n, 1)
    if prod.cls == 'vmem' and prod.storedata:
        if set(prod.storedata) & cw:
            n = max(n, 2 if cons.cls in ('valu', 'mfma') else 1)
    if prod.cls == 'mfma':
        p = prod.passes
        tab_ovl = {2: 4, 4: 6, 8: 10, 16: 18}
        tab_ab = {2: 5, 4: 8, 8: 12, 16: 20}
        war = {2: 1, 4: 3, 8: 7, 16: 15}
        if cons.cls == 'mfma':
            if pw & set(cons.srcAB):
                n = max(n, tab_ab[p])
            if pw & set(cons.srcC):
                if list(cons.srcC) == list(prod.w) and cons.passes == p:
                    n = max(n, 2 if p == 2 else 0)
                else:
                    n = max(n, tab_ovl[p])
            elif pw & cw:
                n = max(n, tab_ovl[p])
        else:
            if pw & (cr | cw):
                n = max(n, tab_ab[p])
            if cons.cls == 'valu' and set(prod.srcC) & cw:
                n = max(n, war[p])
            if cons.cls in ('vmem', 'ds') and set(prod.srcC) & cw:
                n = max(n, war[p])
    return n


MAXLOOK = 24


def pad_hazards(lines):
    out = []
    for text in lines:
        if text.strip() == '.hz_flush':
            dist = 0
            req = 0
            for p in reversed(out[-MAXLOOK:]):
                worst = 0
                if p.cls == 'mfma':
                    worst = {2: 5, 4: 8, 8: 12, 16: 20}[p.passes]
                elif p.cls == 'valu':
                    worst = 5
                elif p.cls == 'vmem' and p.storedata:
                    worst = 2
                elif p.cls == 'salu' and 'm0' in p.w:
                    worst = 1
                req = max(req, worst - dist)
                dist += p.states()
            while req > 0:
                k = min(req, 16)
                out.append(Ins(f'    s_nop {k-1}'))
                req -= k
            continue
        ins = Ins(text)
        if ins.mn:
            dist = 0
            req = 0
            for p in reversed(out):
                if dist >= 20:
                    break
                if p.mn:
                    nn = need(p, ins)
                    if nn > dist:
                        req = max(req, nn - dist)
                dist += p.states()
            while req > 0:
                k = min(req, 16)
                out.append(Ins(f'    s_nop {k-1}'))
                req -= k
        out.append(ins)
    return [i.text for i in out]


class Kern:
    def __init__(self, name):
        self.name = name
        self.L = []
        self.vm = 0
        self.lg = 0
        self.vm_done = 0
        self.lg_done = 0
        self.nlabel = 0

    def e(self, s):
        self.L.append('    ' + s)

    def c(self, s):
        self.L.append('    ; ' + s)

    def label(self, s):
        self.L.append(s + ':')

    def newlabel(self, p='L'):
        self.nlabel += 1
        return f'{p}_{self.name}_{self.nlabel}'

    def flush(self):
        self.L.append('.hz_flush')

    def vmem(self, s):
        self.e(s)
        self.vm += 1
        return self.vm

    def ds(self, s):
        self.e(s)
        self.lg += 1
        return self.lg

    def wait(self, vm=None, lg=None):
        parts = []
        if vm is not None and vm > self.vm_done:
            n = self.vm - vm
            if n > 63:
                n = 63
            parts.append(f'vmcnt({n})')
            self.vm_done = max(self.vm_done, self.vm - n)
        if lg is not None and lg > self.lg_done:
            n = self.lg - lg
            if n > 15:
                n = 15
            parts.append(f'lgkmcnt({n})')
            self.lg_done = max(self.lg_done, self.lg - n)
        if parts:
            self.e('s_waitcnt ' + ' '.join(parts))

    def wait_all(self, vm=True, lg=True):
        parts = []
        if vm:
            parts.append('vmcnt(0)')
            self.vm_done = self.vm
        if lg:
            parts.append('lgkmcnt(0)')
            self.lg_done = self.lg
        self.e('s_waitcnt ' + ' '.join(parts))

    def srd(self, d, lo, hi, nbytes):
        self.e(f's_mov_b32 s{d}, {lo}')
        self.e(f's_and_b32 s{d+1}, {hi}, 0xffff')
        self.e(f's_mov_b32 s{d+2}, {nbytes}')
        self.e(f's_mov_b32 s{d+3}, 0x00020000')

    STAMPS = False

    def stamp(self, name=''):
        if not Kern.STAMPS:
            return
        n = len(self.__dict__.setdefault('stamps', []))
        assert n < 28
        self.stamps.append(name)
        self.e('s_memtime s[98:99]')
        self.e('s_waitcnt lgkmcnt(0)')
        self.e(f's_mov_b32 s{66+n}, s98')
        self.lg_done = self.lg

    def dump_stamps(self, W, base, srd=24):
        if not Kern.STAMPS:
            return
        self.stamp('end')
        n = len(self.stamps)
        self.e('s_lshl_b32 s98, s2, 2')
        self.e(f's_add_u32 s98, s98, s{W}')
        self.e('s_lshl_b32 s98, s98, 7')
        self.e(f's_add_u32 s98, s98, {base}')
        self.e('s_mov_b64 exec, 1')
        self.e('v_mov_b32 v1, 0')
        for i in range(n):
            self.e(f'v_mov_b32 v2, s{66+i}')
            self.e(f'buffer_store_dword v2, v1, s[{srd}:{srd+3}], s98 offen offset:{4*i}')

    def rt_begin(self):
        if Kern.STAMPS:
            self.e('s_memrealtime s[94:95]')

    def rt_end(self, base, srd=24):
        if not Kern.STAMPS:
            return
        self.e('s_memrealtime s[96:97]')
        self.e('s_waitcnt lgkmcnt(0)')
        self.e('s_lshl_b32 s98, s2, 3')
        self.e(f's_add_u32 s98, s98, {base}')
        self.e('s_mov_b64 exec, 1')
        self.e('v_mov_b32 v2, s94')
        self.e('v_mov_b32 v3, s96')
        self.e(f'buffer_store_dwordx2 v[2:3], off, s[{srd}:{srd+3}], s98')

    def text(self):
        return '\n'.join(pad_hazards(self.L))


def vr(b, n=1):
    return f'v{b}' if n == 1 else f'v[{b}:{b+n-1}]'


def ar(b, n=1):
    return f'a{b}' if n == 1 else f'a[{b}:{b+n-1}]'


def sr(b, n=1):
    return f's{b}' if n == 1 else f's[{b}:{b+n-1}]'


def kernel_text(k, nv, na, nsgpr=100):
    acc_off = (nv + 3) // 4 * 4
    nfv = acc_off + na if na else nv
    code = f""".globl {k.name}
.p2align 8
.type {k.name},@function
{k.name}:
{k.text()}
"""
    desc = f""".p2align 6
.amdhsa_kernel {k.name}
  .amdhsa_next_free_vgpr {nfv}
  .amdhsa_next_free_sgpr {nsgpr}
  .amdhsa_accum_offset {acc_off}
  .amdhsa_group_segment_fixed_size 0
  .amdhsa_kernarg_size 104
  .amdhsa_user_sgpr_count 2
  .amdhsa_user_sgpr_kernarg_segment_ptr 1
  .amdhsa_system_sgpr_workgroup_id_x 1
.end_amdhsa_kernel
"""
    return code, desc


def interleave(main, side, lead=0):
    n, m = len(main), len(side)
    j = 0
    for i, op in enumerate(main):
        op()
        tgt = min(m, ((i + 1 + lead) * m + n - 1) // n) if n else m
        while j < tgt:
            side[j]()
            j += 1
    while j < m:
        side[j]()
        j += 1


class Rec:
    def __init__(self, k):
        self.k = k
        self.ops = []

    class T:
        def __init__(self):
            self.v = None

    def e(self, s):
        self.ops.append(lambda: self.k.e(s))

    def vmem(self, s):
        t = Rec.T()

        def f():
            t.v = self.k.vmem(s)
        self.ops.append(f)
        return t

    def ds(self, s):
        t = Rec.T()

        def f():
            t.v = self.k.ds(s)
        self.ops.append(f)
        return t

    def wait(self, vm=None, lg=None):
        def val(x):
            if x is None:
                return None
            if isinstance(x, (list, tuple)):
                return max(val(y) for y in x)
            return x.v if isinstance(x, Rec.T) else x
        self.ops.append(lambda: self.k.wait(vm=val(vm), lg=val(lg)))

    def run(self):
        for f in self.ops:
            f()
        self.ops = []
```

```python
import sys
sys.path.insert(0, 'dev')
from asmgen import *

NAME = 'adaLN_cond__linear_kernel_hedgehog__glu_gated_bilinear__prompt'
MODF = 0x0000
MODB = 0x3000
ST1 = 0x5000
KVP = 0x10000
KVP_STRIDE = 4608
PHQ = 0x200000
OBUF = 0x600000
X1S = 0x800000
EXT8 = 0xA00000
X1K = 0x1300000
ST2 = 0xC00000
HH = 0xD00000
STAMP = 0x1800000
WS_SIZE = 0x1900000
LOG2E = 0x3fb8aa3b

HEADER = open('cdna_kernels/%s.s.ref' % NAME).read().split('; Override launch')[0]


def bf16r(k, dst, src, tmp):
    k.e(f'v_cvt_pk_bf16_f32 {tmp}, {src}, {src}')
    k.e(f'v_lshlrev_b32 {dst}, 16, {tmp}')


def gen_k0():
    k = Kern('k0_mod_kernel')
    end = k.newlabel('END')
    k.e('s_cmp_ge_u32 s2, 96')
    k.e(f's_cbranch_scc1 {end}')
    k.rt_begin()
    k.e('s_load_dwordx4 s[4:7], s[0:1], 64')
    k.e('s_load_dwordx2 s[8:9], s[0:1], 96')
    k.e('v_lshrrev_b32 v1, 2, v0')
    k.e('v_and_b32 v2, 3, v0')
    k.e('v_mul_u32_u24 v3, 6144, v1')
    k.e('v_lshl_add_u32 v3, v2, 4, v3')
    k.e('v_lshlrev_b32 v4, 1, v1')
    k.e('s_lshl_b32 s24, s2, 6')
    k.e('s_waitcnt lgkmcnt(0)')
    k.srd(12, 's4', 's5', 1028)
    k.srd(16, 's6', 's7', 512 * 3072 * 2)
    k.srd(20, 's8', 's9', WS_SIZE)
    tc = []
    for i in range(8):
        tc.append(k.vmem(f'buffer_load_ushort v{8+i}, v4, s[12:15], 0 offen offset:{i*128}'))
    tw = []
    for i in range(8):
        tw.append(k.vmem(f'buffer_load_dwordx4 {vr(32+4*i,4)}, v3, s[16:19], s24 offen'))
        if i < 7:
            k.e(f's_add_u32 s24, s24, {64*6144}')
    for j in range(8):
        k.e(f'v_mov_b32 v{16+j}, 0')
    k.e(f's_mov_b32 s25, 0x{LOG2E:x}')
    k.wait(vm=tc[-1])
    for i in range(8):
        k.e(f'v_lshlrev_b32 v{8+i}, 16, v{8+i}')
    for i in range(8):
        k.e(f'v_mul_f32 v{24+i}, s25, v{8+i}')
    for i in range(8):
        k.e(f'v_exp_f32 v{24+i}, -v{24+i}')
    for i in range(8):
        k.e(f'v_add_f32 v{24+i}, 1.0, v{24+i}')
    for i in range(8):
        k.e(f'v_rcp_f32 v5, v{24+i}')
        k.e(f'v_mul_f32 v6, v{8+i}, v5')
        k.e(f'v_fma_f32 v7, -v6, v{24+i}, v{8+i}')
        k.e(f'v_fma_f32 v7, v7, v5, v6')
        k.e(f'v_cmp_class_f32 vcc, v7, 3')
        k.e(f'v_cndmask_b32 v{8+i}, v7, v6, vcc')
    for i in range(8):
        bf16r(k, f'v{8+i}', f'v{8+i}', f'v{24+i}')
    for i in range(8):
        k.wait(vm=tw[i])
        for j in range(4):
            w = 32 + 4 * i + j
            k.e(f'v_lshlrev_b32 v5, 16, v{w}')
            k.e(f'v_and_b32 v6, 0xffff0000, v{w}')
            k.e(f'v_fmac_f32 v{16+2*j}, v{8+i}, v5')
            k.e(f'v_fmac_f32 v{17+2*j}, v{8+i}, v6')
    k.e('v_lshlrev_b32 v5, 5, v0')
    k.ds('ds_write_b128 v5, v[16:19]')
    k.ds('ds_write_b128 v5, v[20:23] offset:16')
    k.e('v_and_b32 v6, 31, v0')
    k.e('v_lshrrev_b32 v7, 5, v0')
    k.e('v_lshlrev_b32 v7, 10, v7')
    k.e('v_lshl_add_u32 v7, v6, 2, v7')
    k.wait_all(vm=False)
    k.e('s_barrier')
    for i in range(8):
        k.ds(f'ds_read_b32 v{8+i}, v7 offset:{i*128}')
    k.wait_all(vm=False)
    for i in (1, 2, 4):
        for j in range(0, 8, 2 * i):
            k.e(f'v_add_f32 v{8+j}, v{8+j}, v{8+j+i}')
    k.e('v_lshlrev_b32 v5, 2, v0')
    k.ds('ds_write_b32 v5, v8 offset:8192')
    k.wait_all(vm=False)
    k.e('s_barrier')
    k.e('v_cmp_gt_u32 vcc, 32, v0')
    k.e('s_and_saveexec_b64 s[26:27], vcc')
    k.e(f's_cbranch_execz {end}')
    for i in range(8):
        k.ds(f'ds_read_b32 v{8+i}, v5 offset:{8192+i*128}')
    k.wait_all(vm=False)
    for i in (1, 2, 4):
        for j in range(0, 8, 2 * i):
            k.e(f'v_add_f32 v{8+j}, v{8+j}, v{8+j+i}')
    bf16r(k, 'v8', 'v8', 'v9')
    k.e('s_lshr_b32 s24, s2, 4')
    skip = k.newlabel('NOONE')
    k.e('s_cmp_eq_u32 s24, 1')
    k.e('s_cselect_b32 s25, 1, 0')
    k.e('s_cmp_eq_u32 s24, 4')
    k.e('s_cselect_b32 s25, 1, s25')
    k.e('s_cmp_eq_u32 s25, 0')
    k.e(f's_cbranch_scc1 {skip}')
    k.e('v_add_f32 v8, 1.0, v8')
    bf16r(k, 'v8', 'v8', 'v9')
    k.label(skip)
    k.flush()
    k.e('s_lshl_b32 s25, s2, 7')
    k.vmem(f'buffer_store_dword v8, v5, s[20:23], s25 offen offset:{MODF}')
    k.e('v_lshrrev_b32 v9, 16, v8')
    k.e('v_lshlrev_b32 v6, 1, v0')
    k.e('s_lshl_b32 s25, s2, 6')
    k.e(f's_add_u32 s25, s25, {MODB}')
    k.vmem('buffer_store_short v9, v6, s[20:23], s25 offen')
    k.e('s_cmp_ge_u32 s24, 2')
    k.e(f's_cbranch_scc1 {end}X')
    k.e('s_and_b32 s25, s2, 15')
    k.e('s_lshl_b32 s25, s25, 8')
    k.e('s_xor_b32 s26, s24, 1')
    k.e('s_lshl_b32 s26, s26, 2')
    k.e('s_add_u32 s25, s25, s26')
    k.e(f's_add_u32 s25, s25, {ST1}')
    k.e('v_lshlrev_b32 v6, 3, v0')
    k.vmem('buffer_store_dword v8, v6, s[20:23], s25 offen')
    k.label(end + 'X')
    k.rt_end(STAMP + 0xE0000, 20)
    k.label(end)
    k.e('s_endpgm')
    return k, 64, 0, (96, 256, 9216)


def build(kernels, path):
    s = HEADER
    for k, nv, na, (g, b, lds) in kernels:
        s += f'; @launch kernel={k.name} grid=({g},1,1) block=({b},1,1) lds={lds}\n'
    s += '.amdgcn_target "amdgcn-amd-amdhsa--gfx950"\n.text\n'
    descs = ''
    for k, nv, na, _ in kernels:
        c, d = kernel_text(k, nv, na)
        s += c
        descs += d
    s += '.section .rodata,"a"\n' + descs
    open(path, 'w').write(s)


if __name__ == '__main__':
    ks = [gen_k0()]
    build(ks, 'out.s')
```

```python
from gen import *

L_WKV = 0
L_WQ = 33 * 2048
L_PHK = L_WQ + 33 * 1024
L_VFR = L_PHK + 20480
L_RB = L_VFR + 8192


def wg_decode(k, smb, sj):
    k.e(f's_and_b32 s{smb}, s2, 7')
    k.e(f's_lshl_b32 s{smb}, s{smb}, 1')
    k.e(f's_bfe_u32 s{sj}, s2, 0x10003')
    k.e(f's_or_b32 s{smb}, s{smb}, s{sj}')
    k.e(f's_lshr_b32 s{sj}, s2, 4')


def softmax16(k, P, E, OUT, t, sL):
    mx, mn, m2, n2 = t, t + 2, t + 4, t + 5
    k.e(f'v_max3_f32 v{mx}, v{P}, v{P+1}, v{P+2}')
    k.e(f'v_min3_f32 v{mn}, v{P}, v{P+1}, v{P+2}')
    k.e(f'v_max3_f32 v{m2}, v{P+8}, v{P+9}, v{P+10}')
    k.e(f'v_min3_f32 v{n2}, v{P+8}, v{P+9}, v{P+10}')
    for j in (3, 5):
        k.e(f'v_max3_f32 v{mx}, v{mx}, v{P+j}, v{P+j+1}')
        k.e(f'v_min3_f32 v{mn}, v{mn}, v{P+j}, v{P+j+1}')
        k.e(f'v_max3_f32 v{m2}, v{m2}, v{P+8+j}, v{P+8+j+1}')
        k.e(f'v_min3_f32 v{n2}, v{n2}, v{P+8+j}, v{P+8+j+1}')
    k.e(f'v_max3_f32 v{mx}, v{mx}, v{P+7}, v{P+15}')
    k.e(f'v_min3_f32 v{mn}, v{mn}, v{P+7}, v{P+15}')
    k.e(f'v_max_f32 v{mx}, v{mx}, v{m2}')
    k.e(f'v_min_f32 v{mn}, v{mn}, v{n2}')
    k.e(f'v_mul_f32 v{mx}, s{sL}, v{mx}')
    k.e(f'v_mul_f32 v{mn}, s{sL}, v{mn}')
    for j in range(8):
        k.e(f'v_pk_fma_f32 {vr(E+2*j,2)}, {vr(P+2*j,2)}, {sr(sL,2)}, {vr(mx,2)} op_sel_hi:[1,1,0] neg_lo:[0,0,1] neg_hi:[0,0,1]')
    for j in range(8):
        k.e(f'v_pk_fma_f32 {vr(E+16+2*j,2)}, {vr(P+2*j,2)}, {sr(sL,2)}, {vr(mn,2)} op_sel_hi:[1,1,0] neg_lo:[1,0,0] neg_hi:[1,0,0]')
    for j in range(32):
        k.e(f'v_exp_f32 v{E+j}, v{E+j}')
    sp, sn = t, t + 2
    k.e(f'v_pk_add_f32 {vr(sp,2)}, {vr(E,2)}, {vr(E+2,2)}')
    k.e(f'v_pk_add_f32 {vr(sn,2)}, {vr(E+16,2)}, {vr(E+18,2)}')
    for j in range(2, 8):
        k.e(f'v_pk_add_f32 {vr(sp,2)}, {vr(sp,2)}, {vr(E+2*j,2)}')
        k.e(f'v_pk_add_f32 {vr(sn,2)}, {vr(sn,2)}, {vr(E+16+2*j,2)}')
    k.e(f'v_add_f32 v{sp}, v{sp}, v{sp+1}')
    k.e(f'v_add_f32 v{sn}, v{sn}, v{sn+1}')
    k.e(f'v_rcp_f32 v{sp}, v{sp}')
    k.e(f'v_rcp_f32 v{sn}, v{sn}')
    for j in range(8):
        k.e(f'v_pk_mul_f32 {vr(E+2*j,2)}, {vr(E+2*j,2)}, {vr(sp,2)} op_sel_hi:[1,0]')
    for j in range(8):
        k.e(f'v_pk_mul_f32 {vr(E+16+2*j,2)}, {vr(E+16+2*j,2)}, {vr(sn,2)} op_sel_hi:[1,0]')
    for j in range(16):
        k.e(f'v_cvt_pk_bf16_f32 v{OUT+j}, v{E+2*j}, v{E+2*j+1}')


def gen_k1(debug=None):
    k = Kern('k1_qkv_kernel')
    end = k.newlabel('END')
    k.e('s_cmp_ge_u32 s2, 256')
    k.e(f's_cbranch_scc1 {end}')
    k.e('s_load_dwordx4 s[4:7], s[0:1], 0')
    k.e('s_load_dwordx2 s[8:9], s[0:1], 16')
    k.e('s_load_dwordx2 s[10:11], s[0:1], 96')
    MB, HP, W = 28, 29, 30
    wg_decode(k, MB, HP)
    k.e('v_lshrrev_b32 v2, 6, v0')
    k.e('v_and_b32 v1, 63, v0')
    k.e(f'v_readfirstlane_b32 s{W}, v2')
    k.e('v_lshlrev_b32 v3, 4, v1')
    k.e('v_lshrrev_b32 v4, 2, v1')
    k.e('v_and_b32 v5, 3, v1')
    k.e('v_mul_u32_u24 v6, 3072, v4')
    k.e('v_lshl_add_u32 v6, v5, 4, v6')
    k.e('v_lshlrev_b32 v7, 3, v4')
    k.e('s_waitcnt lgkmcnt(0)')
    k.srd(12, 's4', 's5', 2048 * 1024)
    k.srd(16, 's6', 's7', 512 * 3072)
    k.srd(20, 's8', 's9', 32 * 512 + 4)
    k.srd(24, 's10', 's11', WS_SIZE)
    k.stamp('start')
    k.e(f's_lshl_b32 s31, s{MB}, 17')
    k.e(f's_lshl_b32 s32, s{W}, 15')
    k.e('s_add_u32 s31, s31, s32')
    k.e('s_mov_b32 m0, s32')
    tx = []
    for r in range(32):
        k.e(f'v_xor_b32 v{8+(r&1)}, {(r&15)*16}, v3')
        tx.append(k.vmem(f'buffer_load_dwordx4 v{8+(r&1)}, s[12:15], s31 offen offset:{(r&3)*1024} lds'))
        if (r & 3) == 3 and r != 31:
            k.e('s_add_u32 s31, s31, 4096')
            k.e('s_add_u32 m0, m0, 4096')
    WR = 32
    STR = 128
    k.e(f's_mul_i32 s33, s{W}, {32*3072}')
    k.e(f's_lshl_b32 s34, s{HP}, 6')
    k.e('s_add_u32 s33, s33, s34')
    k.e(f's_lshl_b32 s35, s{W}, 8')
    k.e(f's_add_u32 s35, s35, {ST1}')
    tst = {}
    for c in range(4):
        for i in range(2):
            tst[(c, i)] = k.vmem(f'buffer_load_dwordx2 {vr(STR+2*(2*c+i),2)}, v7, s[24:27], s35 offen offset:{c*1024+i*128}')
    twr = {}

    def wreg(c, i, seg):
        if seg == 0:
            return WR + 64 + 4 * (2 * c + i)
        return WR + 4 * (2 * (2 * c + i) + (seg - 1))
    for c in range(4):
        for i in range(2):
            k.e(f's_add_u32 s{36+2*c+i}, s33, {(128*c+16*i)*3072}')
    for c in range(4):
        for i in range(2):
            for seg in (1, 2):
                twr[(c, i, seg)] = k.vmem(f'buffer_load_dwordx4 {vr(wreg(c,i,seg),4)}, v6, s[16:19], s{36+2*c+i} offen offset:{seg*1024}')
    for c in range(4):
        for i in range(2):
            twr[(c, i, 0)] = k.vmem(f'buffer_load_dwordx4 {vr(wreg(c,i,0),4)}, v6, s[16:19], s{36+2*c+i} offen')
    PHI = 248
    k.e('v_bfe_u32 v10, v1, 2, 1')
    k.e('v_lshlrev_b32 v10, 9, v10')
    k.e('v_lshrrev_b32 v11, 5, v1')
    k.e('v_lshl_add_u32 v10, v11, 8, v10')
    k.e('v_bfe_u32 v11, v1, 3, 2')
    k.e('v_lshl_add_u32 v10, v11, 3, v10')
    k.e('v_lshl_add_u32 v10, v5, 1, v10')
    k.e(f's_lshl_b32 s44, s{HP}, 10')
    for e in range(8):
        tphi = k.vmem(f'buffer_load_ushort v{PHI+(e>>1)+4*(e&1)}, v10, s[20:23], s44 offen offset:{e*32}')
    XA = 16
    k.e('v_and_b32 v10, 31, v1')
    k.e('v_lshrrev_b32 v11, 5, v1')
    k.e('v_and_b32 v12, 15, v1')
    k.e('v_xor_b32 v12, v12, v11')
    k.e('v_lshlrev_b32 v12, 4, v12')
    k.e('v_lshl_add_u32 v12, v10, 10, v12')
    k.e(f'v_add_u32 v12, s32, v12')
    for s in range(8):
        k.e(f'v_xor_b32 v{XA+s}, {2*s*16}, v12')
    SA = 24
    for j in range(4):
        k.e(f'v_mov_b32 v{SA+j}, 0')
    k.e('s_mov_b32 s45, 0x3f803f80')
    TMP = 176
    k.stamp('issued')
    k.wait(vm=tx[-1])
    k.stamp('x_arrived')
    for g in range(4):
        tk = []
        for s8 in range(8):
            s = 8 * g + s8
            k.ds(f'ds_read_b128 {ar(4*s,4)}, v{XA+s8} offset:{g*256}')
            tk.append(k.ds(f'ds_read_b128 {vr(TMP+4*s8,4)}, v{XA+s8} offset:{g*256}'))
        for s8 in range(8):
            k.wait(lg=tk[s8])
            for j in range(4):
                r = TMP + 4 * s8 + j
                k.e(f'v_dot2c_f32_bf16 v{SA+(j&1)}, s45, v{r}')
                k.e(f'v_dot2c_f32_bf16 v{SA+2+(j&1)}, v{r}, v{r}')
    k.wait_all(vm=False)
    k.e('s_barrier')
    k.stamp('xfrag+bar')
    k.e(f'v_add_f32 v{SA}, v{SA}, v{SA+1}')
    k.e(f'v_add_f32 v{SA+2}, v{SA+2}, v{SA+3}')
    k.e(f'v_mov_b32 v{SA+1}, v{SA}')
    k.e(f'v_mov_b32 v{SA+3}, v{SA+2}')
    k.e(f'v_permlane32_swap_b32 v{SA}, v{SA+1}')
    k.e(f'v_permlane32_swap_b32 v{SA+2}, v{SA+3}')
    k.e(f'v_add_f32 v{SA}, v{SA}, v{SA+1}')
    k.e(f'v_add_f32 v{SA+2}, v{SA+2}, v{SA+3}')
    k.e(f'v_mul_f32 v{SA}, 0x3b000000, v{SA}')
    k.e(f'v_mul_f32 v{SA+2}, 0x3b000000, v{SA+2}')
    k.e(f'v_fma_f32 v{SA+2}, -v{SA}, v{SA}, v{SA+2}')
    k.e(f'v_max_f32 v{SA+2}, 0, v{SA+2}')
    bf16r(k, f'v{SA+2}', f'v{SA+2}', 'v10')
    k.e(f'v_add_f32 v{SA+2}, 0x3727c5ac, v{SA+2}')
    bf16r(k, f'v{SA+2}', f'v{SA+2}', 'v10')
    k.e(f'v_sqrt_f32 v{SA+2}, v{SA+2}')
    XE = 28
    k.e(f'v_cvt_pk_bf16_f32 v{XE}, -v{SA}, -v{SA}')
    k.e(f'v_cvt_pk_bf16_f32 v{XE+1}, v{SA+2}, v{SA+2}')
    k.e(f'v_mov_b32 v{XE+2}, v{XE}')
    k.e(f'v_mov_b32 v{XE+3}, v{XE+1}')
    k.e(f'v_lshlrev_b32 v{SA+2}, 16, v{XE+1}')
    RS = SA
    k.e(f'v_rcp_f32 v{RS}, v{SA+2}')
    ACC = 144
    U, Pp, Qq = 176, 184, 192
    k.e('s_mov_b32 s46, 0x00003f80')
    k.e('s_mov_b32 s47, 0x3f800000')
    k.e('v_lshrrev_b32 v10, 3, v1')
    k.e('v_xor_b32 v10, v10, v4')
    k.e('v_and_b32 v10, 1, v10')
    k.e('v_lshlrev_b32 v11, 7, v4')
    k.e('v_lshl_add_u32 v11, v5, 4, v11')
    k.e(f's_lshl_b32 s48, s{W}, 12')
    k.e('v_add_u32 v11, s48, v11')
    k.e('v_lshl_add_u32 v12, v10, 6, v11')
    k.e('v_xor_b32 v13, 64, v12')
    k.e('v_lshlrev_b32 v14, 4, v1')
    k.e(f's_lshl_b32 s48, s{W}, 11')
    k.e(f's_add_u32 s48, s48, {L_WQ}')
    k.e('v_add_u32 v14, s48, v14')

    def prep(c, i, seg, slot):
        w = wreg(c, i, seg)
        st = STR + 2 * (2 * c + i)
        A = ACC + 16 * slot
        k.wait(vm=max(twr[(c, i, seg)], tst[(c, i)]))
        for j in range(4):
            k.e(f'v_lshlrev_b32 v{U+2*j}, 16, v{w+j}')
            k.e(f'v_and_b32 v{U+2*j+1}, 0xffff0000, v{w+j}')
        for j in range(4):
            k.e(f'v_pk_mul_f32 {vr(Pp+2*j,2)}, {vr(U+2*j,2)}, {vr(st,2)} op_sel_hi:[1,0]')
        for j in range(4):
            k.e(f'v_pk_fma_f32 {vr(A+8+2*j,2)}, {vr(U+2*j,2)}, {vr(st,2)}, {vr(A+8+2*j,2)} op_sel:[0,1,0]')
        q = Qq + 4 * ((2 * c + i + seg) & 1)
        for j in range(4):
            k.e(f'v_cvt_pk_bf16_f32 v{q+j}, v{Pp+2*j}, v{Pp+2*j+1}')
        for j in range(4):
            k.e(f'v_dot2c_f32_bf16 v{A+2*j}, s46, v{q+j}')
            k.e(f'v_dot2c_f32_bf16 v{A+2*j+1}, s47, v{q+j}')
        if seg == 0:
            k.ds(f'ds_write_b128 v14, {vr(q,4)} offset:{(128*c+16*i)*64}')
        else:
            k.ds(f'ds_write_b128 v{11+seg}, {vr(q,4)} offset:{(128*c+16*i)*128}')

    def reduce_ext(seg, slot):
        A = ACC + 16 * slot
        for j in range(8):
            k.e(f'v_permlane32_swap_b32 v{A+j}, v{A+8+j}')
        for j in range(8):
            k.e(f'v_add_f32 v{A+j}, v{A+j}, v{A+8+j}')
        for j in range(4):
            k.e(f'v_permlane16_swap_b32 v{A+j}, v{A+4+j}')
        for j in range(4):
            k.e(f'v_add_f32 v{A+j}, v{A+j}, v{A+4+j}')
        for rot in (4, 8):
            for j in range(4):
                k.e(f'v_add_f32_dpp v{A+j}, v{A+j}, v{A+j} row_ror:{rot} row_mask:0xf bank_mask:0xf')
        H, Lo = A + 4, A + 6
        k.e(f'v_cvt_pk_bf16_f32 v{H}, v{A}, v{A+1}')
        k.e(f'v_cvt_pk_bf16_f32 v{H+1}, v{A+2}, v{A+3}')
        for j in range(2):
            k.e(f'v_lshlrev_b32 v{A+8+2*j}, 16, v{H+j}')
            k.e(f'v_and_b32 v{A+9+2*j}, 0xffff0000, v{H+j}')
        for j in range(4):
            k.e(f'v_sub_f32 v{A+j}, v{A+j}, v{A+8+j}')
        k.e(f'v_cvt_pk_bf16_f32 v{Lo}, v{A}, v{A+1}')
        k.e(f'v_cvt_pk_bf16_f32 v{Lo+1}, v{A+2}, v{A+3}')
        T = A + 8
        k.e(f'v_lshrrev_b32 v{T}, 5, v1')
        k.e(f'v_bfe_u32 v{T+1}, v1, 4, 1')
        k.e(f'v_lshlrev_b32 v{T+2}, 4, v5')
        k.e(f'v_lshl_add_u32 v{T+2}, v{T+1}, 3, v{T+2}')
        if seg == 0:
            k.e(f'v_lshl_add_u32 v{T+2}, v{T}, 7, v{T+2}')
            k.e(f's_lshl_b32 s48, s{W}, 8')
            k.e(f's_add_u32 s48, s48, {L_WQ+512*64}')
            k.e(f'v_add_u32 v{T+2}, s48, v{T+2}')
            k.ds(f'ds_write_b64 v{T+2}, {vr(H,2)}')
            k.ds(f'ds_write_b64 v{T+2}, {vr(Lo,2)} offset:64')
        else:
            k.e(f'v_lshl_add_u32 v{T+2}, v{T}, 8, v{T+2}')
            k.e(f's_lshl_b32 s48, s{W}, 9')
            k.e(f's_add_u32 s48, s48, {L_WKV+512*128}')
            k.e(f'v_add_u32 v{T+2}, s48, v{T+2}')
            k.e(f'v_xor_b32 v{T}, {seg-1}, v{T}')
            k.e(f'v_lshl_add_u32 v{T+3}, v{T}, 6, v{T+2}')
            k.e(f'v_xor_b32 v{T+2}, 64, v{T+3}')
            k.ds(f'ds_write_b64 v{T+3}, {vr(H,2)}')
            k.ds(f'ds_write_b64 v{T+2}, {vr(Lo,2)} offset:128')

    for j in range(32):
        k.e(f'v_mov_b32 v{ACC+j}, 0')
    for c in range(4):
        for i in range(2):
            prep(c, i, 1, 0)
            prep(c, i, 2, 1)
    k.stamp('prepKV')
    reduce_ext(1, 0)
    reduce_ext(2, 1)
    for j in range(16):
        k.e(f'v_mov_b32 v{ACC+j}, 0')
    for c in range(4):
        for i in range(2):
            prep(c, i, 0, 0)
    reduce_ext(0, 0)
    k.stamp('prepQ')
    AK, AV, AQ = 8, 10, 12
    k.e('v_lshrrev_b32 v14, 5, v1')
    k.e('v_bfe_u32 v15, v1, 2, 2')
    k.e('v_lshl_add_u32 v14, v14, 3, v15')
    k.e('v_lshrrev_b32 v13, 1, v15')
    k.e('v_xor_b32 v13, v13, v15')
    k.e('v_and_b32 v13, 1, v13')
    k.e('v_bfe_u32 v15, v1, 4, 1')
    k.e('v_and_b32 v2, 1, v1')
    k.e('v_lshlrev_b32 v2, 4, v2')
    k.e('v_bfe_u32 v3, v1, 1, 1')
    k.e('v_lshl_add_u32 v2, v3, 3, v2')
    k.e('v_lshl_add_u32 v2, v15, 5, v2')
    k.e('v_lshlrev_b32 v3, 3, v5')
    k.e('v_lshl_add_u32 v3, v15, 5, v3')
    k.e(f'v_lshl_add_u32 v{AK}, v14, 7, v2')
    k.e(f'v_lshl_add_u32 v{AK}, v13, 6, v{AK}')
    k.e(f'v_add_u32 v{AK+1}, 0x8000, v{AK}')
    k.e('v_xor_b32 v13, 1, v13')
    k.e(f'v_lshl_add_u32 v{AV}, v14, 7, v3')
    k.e(f'v_lshl_add_u32 v{AV}, v13, 6, v{AV}')
    k.e(f'v_add_u32 v{AV+1}, 0x8000, v{AV}')
    k.e(f'v_lshl_add_u32 v{AQ}, v14, 6, v2')
    k.e(f'v_add_u32 v{AQ}, {L_WQ}, v{AQ}')
    k.wait(vm=tphi)
    for j in range(4):
        k.e(f'v_lshl_or_b32 v{PHI+j}, v{PHI+4+j}, 16, v{PHI+j}')
    k.e('v_and_b32 v13, 4, v1')
    k.e('v_cmp_eq_u32 vcc, 0, v13')
    for j in range(4):
        k.e(f'v_cndmask_b32 v{PHI+4+j}, v{PHI+j}, 0, vcc')
    for j in range(4):
        k.e(f'v_cndmask_b32 v{PHI+j}, 0, v{PHI+j}, vcc')
    k.e(f's_mov_b32 s50, 0x{LOG2E:x}')
    k.e(f's_mov_b32 s51, 0x{LOG2E:x}')
    k.wait_all(vm=False)
    k.e('s_barrier')
    k.stamp('bar2')
    AccK, AccV, AccQ = 200, 216, 232
    FB = 32
    NST = 3

    def xfrag(s):
        return ar(4 * s, 4) if s < 32 else vr(XE, 4)

    def rd_kv(s):
        st = s % NST
        o = (s & 15) * 2048 if s < 32 else 16 * 2048
        hi = 1 if s >= 16 else 0
        t = None
        for t_ in range(2):
            k.ds(f'ds_read_b64_tr_b16 {vr(FB+8*st+2*t_,2)}, v{AK+hi} offset:{o+t_*512}')
        for t_ in range(2):
            t = k.ds(f'ds_read_b64_tr_b16 {vr(FB+8*st+4+2*t_,2)}, v{AV+hi} offset:{o+t_*512}')
        return t
    tk = {}
    for s in range(NST - 1):
        tk[s] = rd_kv(s)
    for s in range(33):
        if s + NST - 1 < 33:
            tk[s + NST - 1] = rd_kv(s + NST - 1)
        st = s % NST
        k.wait(lg=tk[s])
        ck = vr(AccK, 16) if s else '0'
        cv = vr(AccV, 16) if s else '0'
        k.e(f'v_mfma_f32_32x32x16_bf16 {vr(AccK,16)}, {vr(FB+8*st,4)}, {xfrag(s)}, {ck}')
        k.e(f'v_mfma_f32_32x32x16_bf16 {vr(AccV,16)}, {xfrag(s)}, {vr(FB+8*st+4,4)}, {cv}')
    k.stamp('kvloop')
    KB = 64
    PK = 80
    E = 96
    PH = 128
    T8 = 144
    k.e('v_and_b32 v13, 31, v1')
    k.e('v_lshlrev_b32 v13, 2, v13')
    k.e(f's_lshl_b32 s48, s{W}, 7')
    k.e(f's_add_u32 s48, s48, {L_RB}')
    k.e('v_add_u32 v13, s48, v13')
    k.ds(f'ds_write_b32 v13, v{RS}')
    k.e('v_lshrrev_b32 v14, 5, v1')
    k.e('v_lshlrev_b32 v14, 4, v14')
    k.e('v_add_u32 v14, s48, v14')
    RR = 160
    k.wait_all(vm=False)
    for a in range(4):
        trr = k.ds(f'ds_read_b128 {vr(RR+4*a,4)}, v14 offset:{a*32}')

    def proj_softmax(Acc):
        for j in range(8):
            k.e(f'v_pk_mul_f32 {vr(Acc+2*j,2)}, {vr(Acc+2*j,2)}, {vr(RS,2)} op_sel_hi:[1,0]')
        for j in range(8):
            k.e(f'v_cvt_pk_bf16_f32 v{KB+j}, v{Acc+2*j}, v{Acc+2*j+1}')
        k.e(f'v_mfma_f32_32x32x16_bf16 {vr(PK,16)}, {vr(PHI,4)}, {vr(KB,4)}, 0')
        k.e(f'v_mfma_f32_32x32x16_bf16 {vr(PK,16)}, {vr(PHI+4,4)}, {vr(KB+4,4)}, {vr(PK,16)}')

    proj_softmax(AccK)
    VB = 72
    k.wait(lg=trr)
    for j in range(8):
        k.e(f'v_pk_mul_f32 {vr(AccV+2*j,2)}, {vr(AccV+2*j,2)}, {vr(RR+2*j,2)}')
    for j in range(8):
        k.e(f'v_cvt_pk_bf16_f32 v{VB+j}, v{AccV+2*j}, v{AccV+2*j+1}')
    k.e('v_lshlrev_b32 v13, 4, v1')
    k.e(f's_lshl_b32 s48, s{W}, 11')
    k.e(f's_add_u32 s48, s48, {L_VFR}')
    k.e('v_add_u32 v13, s48, v13')
    k.ds(f'ds_write_b128 v13, {vr(VB,4)}')
    k.ds(f'ds_write_b128 v13, {vr(VB+4,4)} offset:1024')
    softmax16(k, PK, E, PH, T8, 50)
    k.e('v_and_b32 v13, 31, v1')
    k.e('v_mul_u32_u24 v13, 80, v13')
    k.e('v_lshrrev_b32 v14, 5, v1')
    k.e('v_mul_u32_u24 v14, 2560, v14')
    k.e(f's_mul_i32 s48, s{W}, 5120')
    k.e(f's_add_u32 s48, s48, {L_PHK}')
    k.e('v_add3_u32 v13, v13, v14, s48')
    for j in range(4):
        k.ds(f'ds_write_b128 v13, {vr(PH+4*j,4)} offset:{16*j}')
    k.wait_all(vm=False)
    k.e('s_barrier')
    k.stamp('kepi')
    skipkv = k.newlabel('SKIPKV')
    k.e(f's_cmp_ge_u32 s{W}, 2')
    k.e(f's_cbranch_scc1 {skipkv}')
    k.e('v_and_b32 v13, 15, v1')
    k.e('v_and_b32 v14, 32, v1')
    k.e('v_add_u32 v13, v13, v14')
    k.e('v_lshlrev_b32 v13, 4, v13')
    k.e(f's_lshl_b32 s48, s{W}, 8')
    k.e(f's_add_u32 s48, s48, {L_VFR}')
    k.e('v_add_u32 v13, s48, v13')
    k.e('v_lshrrev_b32 v14, 5, v1')
    k.e('v_bfe_u32 v15, v1, 2, 2')
    k.e('v_lshl_add_u32 v14, v14, 2, v15')
    k.e('v_mul_u32_u24 v14, 80, v14')
    k.e(f's_mul_i32 s48, s{W}, 2560')
    k.e(f's_add_u32 s48, s48, {L_PHK}')
    k.e('v_add3_u32 v14, v14, v3, s48')
    k.e('v_and_b32 v15, 16, v1')
    k.e('v_cmp_eq_u32 vcc, 0, v15')
    k.e('v_mov_b32 v15, 0x3f803f80')
    KA, KBf = 32, 64
    tks = []
    for ww in range(4):
        for t_ in range(2):
            n = 2 * ww + t_
            k.ds(f'ds_read_b128 {vr(KA+4*n,4)}, v13 offset:{ww*2048+t_*1024}')
            k.ds(f'ds_read_b64_tr_b16 {vr(KBf+4*n,2)}, v14 offset:{ww*5120+t_*16*80}')
            tks.append(k.ds(f'ds_read_b64_tr_b16 {vr(KBf+4*n+2,2)}, v14 offset:{ww*5120+t_*16*80+8*80}'))
    DK = 96
    for n in range(8):
        k.wait(lg=tks[n])
        for j in range(4):
            k.e(f'v_cndmask_b32 v{KA+4*n+j}, v15, v{KA+4*n+j}, vcc')
        k.e(f'v_mfma_f32_32x32x16_bf16 {vr(DK,16)}, {vr(KA+4*n,4)}, {vr(KBf+4*n,4)}, {vr(DK,16) if n else 0}')
    k.e(f's_lshl_b32 s48, s{HP}, 4')
    k.e(f's_add_u32 s48, s48, s{MB}')
    k.e(f's_mul_i32 s48, s48, {KVP_STRIDE}')
    k.e(f's_mul_i32 s49, s{W}, 2304')
    k.e('s_add_u32 s48, s48, s49')
    k.e(f's_add_u32 s48, s48, {KVP}')
    k.e('v_lshlrev_b32 v13, 4, v1')
    k.e('v_lshlrev_b32 v14, 2, v1')
    k.vmem(f'buffer_store_dwordx4 {vr(DK,4)}, v13, s[24:27], s48 offen')
    k.vmem(f'buffer_store_dwordx4 {vr(DK+4,4)}, v13, s[24:27], s48 offen offset:1024')
    k.vmem(f'buffer_store_dword v{DK+8}, v14, s[24:27], s48 offen offset:2048')
    k.flush()
    k.label(skipkv)
    NSQ = 4

    def rd_q(s):
        st = s % NSQ
        t = None
        for t_ in range(2):
            t = k.ds(f'ds_read_b64_tr_b16 {vr(FB+4*st+2*t_,2)}, v{AQ} offset:{s*1024+t_*256}')
        return t
    k.lg_done = k.lg
    k.e('s_waitcnt lgkmcnt(0)')
    k.stamp('kvpart')
    tq = {}
    for s in range(NSQ - 1):
        tq[s] = rd_q(s)
    for s in range(33):
        if s + NSQ - 1 < 33:
            tq[s + NSQ - 1] = rd_q(s + NSQ - 1)
        st = s % NSQ
        k.wait(lg=tq[s])
        k.e(f'v_mfma_f32_32x32x16_bf16 {vr(AccQ,16)}, {vr(FB+4*st,4)}, {xfrag(s)}, {vr(AccQ,16) if s else 0}')
    k.stamp('qloop')
    if debug == 'accq':
        PH = AccQ
    elif debug == 'stats':
        PH = 16
    elif debug == 'pk':
        proj_softmax(AccQ)
        PH = PK
    else:
        proj_softmax(AccQ)
        softmax16(k, PK, E, PH, T8, 50)
        for j in range(4):
            k.e(f'v_permlane32_swap_b32 v{PH+j}, v{PH+4+j}')
            k.e(f'v_permlane32_swap_b32 v{PH+8+j}, v{PH+12+j}')
    k.e('s_lshl_b32 s48, s2, 14')
    k.e(f's_lshl_b32 s49, s{W}, 12')
    k.e('s_add_u32 s48, s48, s49')
    k.e(f's_add_u32 s48, s48, {PHQ}')
    k.e('v_lshlrev_b32 v13, 4, v1')
    for q in range(4):
        k.vmem(f'buffer_store_dwordx4 {vr(PH+4*q,4)}, v13, s[24:27], s48 offen offset:{q*1024}')
    k.dump_stamps(W, STAMP + 0x20000)
    k.label(end)
    k.e('s_endpgm')
    return k, 256, 128, (256, 256, 131072)


if __name__ == '__main__':
    build([gen_k0(), gen_k1()], 'out.s')
    for d in ('accq', 'stats', 'pk'):
        build([gen_k0(), gen_k1(d)], f'out_{d}.s')
```

```python
from gen_rest import *

UOFF = 24 * 3072 + 128


def ln_finalize(k, S1, S2, XE, R, t, half_zero):
    k.e(f'v_mul_f32 v{S1}, 0x3b000000, v{S1}')
    k.e(f'v_mul_f32 v{S2}, 0x3b000000, v{S2}')
    k.e(f'v_fma_f32 v{S2}, -v{S1}, v{S1}, v{S2}')
    k.e(f'v_max_f32 v{S2}, 0, v{S2}')
    bf16r(k, f'v{S2}', f'v{S2}', f'v{t}')
    k.e(f'v_add_f32 v{S2}, 0x3727c5ac, v{S2}')
    bf16r(k, f'v{S2}', f'v{S2}', f'v{t}')
    k.e(f'v_sqrt_f32 v{S2}, v{S2}')
    k.e(f'v_cvt_pk_bf16_f32 v{XE}, -v{S1}, -v{S1}')
    k.e(f'v_cvt_pk_bf16_f32 v{XE+1}, v{S2}, v{S2}')
    k.e(f'v_lshlrev_b32 v{S2}, 16, v{XE+1}')
    k.e(f'v_rcp_f32 v{R}, v{S2}')
    k.e('v_cmp_gt_u32 vcc, 32, v1')
    k.e(f'v_mov_b32 v{XE+2}, 0')
    k.e(f'v_mov_b32 v{XE+3}, 0')
    k.e(f'v_cndmask_b32 v{XE}, 0, v{XE}, vcc')
    k.e(f'v_cndmask_b32 v{XE+1}, 0, v{XE+1}, vcc')


def gen_k3():
    k = Kern('k3_gu_kernel')
    end = k.newlabel('END')
    k.e('s_cmp_ge_u32 s2, 256')
    k.e(f's_cbranch_scc1 {end}')
    k.e('s_load_dwordx4 s[4:7], s[0:1], 40')
    k.e('s_load_dwordx2 s[10:11], s[0:1], 96')
    MB, J, W = 28, 29, 30
    wg_decode(k, MB, J)
    lane_setup(k, W)
    k.e('v_lshlrev_b32 v3, 4, v1')
    k.e('s_mov_b32 s31, 10923')
    for m_ in range(3):
        k.e(f'v_add_u32 v7, {64*m_}, v1')
        k.e('v_mul_u32_u24 v8, s31, v7')
        k.e('v_lshrrev_b32 v8, 16, v8')
        k.e('v_mul_u32_u24 v9, 6, v8')
        k.e('v_sub_u32 v9, v7, v9')
        k.e('v_mul_u32_u24 v8, 2752, v8')
        k.e(f'v_lshl_add_u32 v{4+m_}, v9, 4, v8')
    ST = 31
    k.e(f's_mul_i32 s{ST}, s{J}, {16*21846}')
    k.e(f's_lshr_b32 s{ST}, s{ST}, 16')
    k.e('s_waitcnt lgkmcnt(0)')
    k.srd(12, 's4', 's5', 512 * 2752)
    k.srd(16, 's6', 's7', 512 * 2752)
    k.srd(24, 's10', 's11', WS_SIZE)
    k.e(f's_mul_i32 s32, s{W}, {32*2752}')
    k.e(f's_lshl_b32 s33, s{ST}, 5')
    k.e('s_add_u32 s32, s32, s33')
    k.e(f's_mul_i32 s33, s{W}, 3072')
    TB = 34
    k.e(f's_lshl_b32 s{TB}, s{MB}, 2')
    k.e(f's_add_u32 s{TB}, s{TB}, s{W}')
    k.e(f's_lshl_b32 s35, s{TB}, 15')
    k.e(f's_add_u32 s35, s35, {X1S}')

    def slot_of(p, c):
        if p == 0:
            return 4 * c
        return (16, 20, 0, 4)[c]

    def dma(p, c):
        t = None
        k.e(f's_add_u32 s36, s32, {c*128*2752+p*96}')
        for u in range(2):
            for m_ in range(3):
                k.e(f's_add_u32 m0, s33, {slot_of(p,c)*3072+u*UOFF+m_*1024}')
                t = k.vmem(f'buffer_load_dwordx4 v{4+m_}, s[{12+4*u}:{15+4*u}], s36 offen lds')
        return t

    def act(c):
        t = None
        for s8 in range(8):
            if (s8 & 3) == 0:
                k.e(f's_add_u32 s37, s35, {(8*c+s8)*1024}')
            t = k.vmem(f'buffer_load_dwordx4 {ar(4*(8*c+s8),4)}, v3, s[24:27], s37 offen offset:{(s8&3)*1024}')
        return t
    td = {}
    ta = {}
    k.stamp('start')
    td[(0, 0)] = dma(0, 0)
    ta[0] = act(0)
    SV = 96
    k.e('v_and_b32 v7, 31, v1')
    k.e('v_lshlrev_b32 v8, 3, v7')
    k.e('v_lshlrev_b32 v7, 2, v7')
    k.e('v_lshrrev_b32 v9, 5, v1')
    k.e('v_lshl_add_u32 v7, v9, 13, v7')
    k.e(f's_lshl_b32 s38, s{TB}, 7')
    k.e(f's_add_u32 s38, s38, {ST2}')
    for b in range(16):
        tst = k.vmem(f'buffer_load_dword v{SV+b}, v7, s[24:27], s38 offen')
        if b < 15:
            k.e('s_add_u32 s38, s38, 16384')
    EX = 112
    k.e(f's_lshl_b32 s38, s{ST}, 8')
    k.e(f's_add_u32 s38, s38, {EXT8}')
    for b in range(6):
        tex = k.vmem(f'buffer_load_dwordx2 {vr(EX+4*b,2)}, v8, s[24:27], s38 offen offset:{b*256}')
        k.e(f'v_mov_b32 v{EX+4*b+2}, 0')
        k.e(f'v_mov_b32 v{EX+4*b+3}, 0')
    td[(0, 1)] = dma(0, 1)
    ta[1] = act(1)
    td[(0, 2)] = dma(0, 2)
    k.e('v_and_b32 v10, 1, v1')
    k.e('v_lshlrev_b32 v10, 4, v10')
    k.e('v_bfe_u32 v12, v1, 1, 1')
    k.e('v_lshl_add_u32 v10, v12, 3, v10')
    k.e('v_bfe_u32 v12, v1, 2, 2')
    k.e('v_lshl_add_u32 v12, v9, 3, v12')
    k.e('v_mul_u32_u24 v12, 96, v12')
    k.e('v_add_u32 v10, v10, v12')
    k.e('v_bfe_u32 v12, v1, 4, 1')
    k.e(f'v_mul_u32_u24 v12, {UOFF}, v12')
    k.e('v_add_u32 v10, v10, v12')
    k.e('v_add_u32 v11, 0xc000, v10')
    ACC = 144
    FB = 16
    NST = 3
    XE, R2 = 136, 140

    def rd(p, s):
        st = s % NST
        slot = slot_of(p, s >> 3) + ((s >> 1) & 3)
        o = slot * 3072 + (s & 1) * 1536
        a = 10
        if slot >= 16:
            o -= 49152
            a = 11
        ts = []
        for b in range(3):
            k.ds(f'ds_read_b64_tr_b16 {vr(FB+12*st+4*b,2)}, v{a} offset:{o+b*32}')
            ts.append(k.ds(f'ds_read_b64_tr_b16 {vr(FB+12*st+4*b+2,2)}, v{a} offset:{o+b*32+384}'))
        return ts

    later = {
        (0, 0): lambda: (ta.__setitem__(2, act(2)), td.__setitem__((0, 3), dma(0, 3)), ta.__setitem__(3, act(3))),
        (0, 1): lambda: (td.__setitem__((1, 0), dma(1, 0)), td.__setitem__((1, 1), dma(1, 1)), td.__setitem__((1, 2), dma(1, 2))),
        (0, 2): lambda: (td.__setitem__((1, 3), dma(1, 3)),),
    }
    for p in range(2):
        A = ACC + 48 * p
        for c in range(4):
            k.wait(vm=td[(p, c)])
            k.wait_all(vm=False)
            k.e('s_barrier')
            k.stamp(f'bar{p}{c}')
            if (p, c) in later:
                later[(p, c)]()
            tr = {}
            for s in range(8 * c, 8 * c + NST - 1):
                tr[s] = rd(p, s)
            if p == 0:
                k.wait(vm=ta[c])
            for s in range(8 * c, 8 * c + 8):
                if s + NST - 1 < 8 * c + 8:
                    tr[s + NST - 1] = rd(p, s + NST - 1)
                st = s % NST
                for b in range(3):
                    k.wait(lg=tr[s][b])
                    a = A + 16 * b
                    k.e(f'v_mfma_f32_32x32x16_bf16 {vr(a,16)}, {vr(FB+12*st+4*b,4)}, {ar(4*s,4)}, {vr(a,16) if s else 0}')
            if p == 0 and c == 0:
                k.wait(vm=tex)
                for i in (1, 2, 4, 8):
                    for j in range(0, 16, 2 * i):
                        k.e(f'v_add_f32 v{SV+j}, v{SV+j}, v{SV+j+i}')
                k.e(f'v_mov_b32 v{SV+1}, v{SV}')
                k.e(f'v_permlane32_swap_b32 v{SV}, v{SV+1}')
                ln_finalize(k, SV, SV + 1, XE, R2, SV + 2, True)
                k.e(f'v_mul_f32 v{R2}, v{R2}, v{R2}')
        k.stamp(f'loop{p}')
        for b in range(3):
            a = A + 16 * b
            k.e(f'v_mfma_f32_32x32x16_bf16 {vr(a,16)}, {vr(EX+4*(3*p+b),4)}, {vr(XE,4)}, {vr(a,16)}')
        k.e(f's_mul_i32 s38, s{TB}, 86')
        k.e(f's_add_u32 s38, s38, s{ST}')
        k.e('s_lshl_b32 s38, s38, 10')
        k.e(f's_add_u32 s38, s38, {HH+p*3072}')
        for b in range(3):
            a = A + 16 * b
            for j in range(4):
                k.e(f'v_pk_mul_f32 {vr(a+2*j,2)}, {vr(a+2*j,2)}, {vr(a+8+2*j,2)}')
            for j in range(4):
                k.e(f'v_pk_mul_f32 {vr(a+2*j,2)}, {vr(a+2*j,2)}, {vr(R2,2)} op_sel_hi:[1,0]')
            for j in range(4):
                k.e(f'v_cvt_pk_bf16_f32 v{a+8+j}, v{a+2*j}, v{a+2*j+1}')
            k.vmem(f'buffer_store_dwordx4 {vr(a+8,4)}, v3, s[24:27], s38 offen offset:{b*1024}')
    k.dump_stamps(W, STAMP + 0x80000)
    k.label(end)
    k.e('s_endpgm')
    return k, 240, 128, (256, 256, 2 * 24 * 3072 + 128)


def gen_k4():
    k = Kern('k4_down_kernel')
    end = k.newlabel('END')
    k.e('s_cmp_ge_u32 s2, 256')
    k.e(f's_cbranch_scc1 {end}')
    k.e('s_load_dwordx2 s[6:7], s[0:1], 56')
    k.e('s_load_dwordx2 s[4:5], s[0:1], 80')
    k.e('s_load_dwordx2 s[10:11], s[0:1], 96')
    MB, J, W = 28, 29, 30
    wg_decode(k, MB, J)
    lane_setup(k, W)
    k.e('v_lshlrev_b32 v3, 4, v1')
    stage_addr(k, 4, 5, 6, 1024)
    TH, CB, TBO, NBO, KS0 = 31, 32, 33, 34, 50
    k.e(f's_and_b32 s{TH}, s{J}, 1')
    k.e(f's_lshr_b32 s{CB}, s{J}, 1')
    k.e(f's_and_b32 s{TBO}, s{W}, 1')
    k.e(f's_lshr_b32 s{NBO}, s{W}, 1')
    k.e(f's_mul_i32 s{KS0}, s{W}, 22')
    k.e(f's_cmp_eq_u32 s{W}, 3')
    k.e(f's_cselect_b32 s{KS0}, 65, s{KS0}')
    k.e('s_waitcnt lgkmcnt(0)')
    k.srd(12, 's4', 's5', 2048 * 1024)
    k.srd(16, 's6', 's7', 1376 * 1024)
    k.srd(24, 's10', 's11', WS_SIZE)
    k.e(f's_lshl_b32 s35, s{KS0}, 14')
    k.e(f's_lshl_b32 s36, s{CB}, 7')
    k.e('s_add_u32 s35, s35, s36')
    k.e(f's_lshl_b32 s37, s{W}, 15')
    k.e(f's_lshl_b32 s38, s{MB}, 2')
    k.e(f's_lshl_b32 s39, s{TH}, 1')
    k.e('s_add_u32 s38, s38, s39')
    k.e(f's_add_u32 s40, s38, s{TBO}')
    k.e('s_xor_b32 s41, s40, 1')
    for s_ in (40, 41):
        k.e(f's_mul_i32 s{s_+2}, s{s_}, 86')
        k.e(f's_add_u32 s{s_+2}, s{s_+2}, s{KS0}')
        k.e(f's_lshl_b32 s{s_+2}, s{s_+2}, 10')
        k.e(f's_add_u32 s{s_+2}, s{s_+2}, {HH}')
    NK = 22
    RING = 16

    def dma(s):
        t = None
        for h in range(2):
            k.e(f's_add_u32 m0, s37, {(s%RING)*2048+h*1024}')
            t = k.vmem('buffer_load_dwordx4 v4, s[16:19], s35 offen lds')
            k.e('s_add_u32 s35, s35, 8192')
        return t

    def act(s):
        t = None
        if s and (s & 3) == 0:
            k.e('s_add_u32 s42, s42, 4096')
            k.e('s_add_u32 s43, s43, 4096')
        if s == NK - 1:
            k.e(f's_cmp_ge_u32 s{W}, 2')
            k.e(f's_cselect_b32 s42, 0x7f000000, s42')
            k.e(f's_cselect_b32 s43, 0x7f000000, s43')
        for tb in range(2):
            t = k.vmem(f'buffer_load_dwordx4 {ar(8*s+4*tb,4)}, v3, s[24:27], s{42+tb} offen offset:{(s&3)*1024}')
        return t
    k.stamp('start')
    tl = {}
    PRE = 14
    for s in range(PRE):
        dma(s)
        tl[s] = act(s)
    k.stamp('issued')
    tr_addr_128(k, 8, 9, NBO, 37, 10)
    ACC = 32
    FB = 16
    X1r, GBr = 96, 112
    for s in range(NK):
        k.wait(vm=tl[s])
        if s in (0, 4, 8, 12, 16, 20):
            k.stamp(f's{s}')
        st = s & 1
        tt = []
        for sa in range(2):
            k.ds(f'ds_read_b64_tr_b16 {vr(FB+8*st+4*sa,2)}, v{8+sa} offset:{(s%RING)*2048}')
            tt.append(k.ds(f'ds_read_b64_tr_b16 {vr(FB+8*st+4*sa+2,2)}, v{8+sa} offset:{(s%RING)*2048+512}'))
        n = s + PRE
        if n < NK:
            dma(n)
            tl[n] = act(n)
        if n == NK:
            k.e('s_lshl_b32 s48, s2, 14')
            k.e(f's_lshl_b32 s49, s{W}, 12')
            k.e('s_add_u32 s48, s48, s49')
            k.e(f's_add_u32 s48, s48, {X1K}')
            for q in range(4):
                k.vmem(f'buffer_load_dwordx4 {vr(X1r+4*q,4)}, v3, s[24:27], s48 offen offset:{q*1024}')
            k.e('v_lshrrev_b32 v6, 5, v1')
            k.e('v_lshlrev_b32 v7, 5, v6')
            k.e(f's_lshl_b32 s45, s{CB}, 1')
            k.e(f's_add_u32 s45, s45, s{NBO}')
            k.e('s_lshl_b32 s46, s45, 7')
            k.e(f's_add_u32 s46, s46, {MODF+5*2048}')
            for q in range(2):
                for h in range(2):
                    tep = k.vmem(f'buffer_load_dwordx4 {vr(GBr+8*q+4*h,4)}, v7, s[24:27], s46 offen offset:{q*64+h*16}')
        for sa in range(2):
            k.wait(lg=tt[sa])
            for sb in range(2):
                a = ACC + 16 * (2 * sa + sb)
                k.e(f'v_mfma_f32_32x32x16_bf16 {vr(a,16)}, {vr(FB+8*st+4*sa,4)}, {ar(8*s+4*sb,4)}, {vr(a,16) if s else 0}')
    k.stamp('loop')
    k.e('s_barrier')
    xreduce(k, ACC, W, 0, 136, 48)
    k.stamp('red')
    k.wait(vm=tep)
    for j in range(8):
        k.e(f'v_pk_fma_f32 {vr(ACC+2*j,2)}, {vr(ACC+2*j,2)}, {vr(GBr+2*j,2)}, {vr(X1r+2*j,2)}')
    for j in range(8):
        k.e(f'v_cvt_pk_bf16_f32 v{64+j}, v{ACC+2*j}, v{ACC+2*j+1}')
    k.e('v_and_b32 v5, 31, v1')
    k.e('v_lshlrev_b32 v5, 10, v5')
    k.e('v_lshl_add_u32 v5, v6, 4, v5')
    k.e('s_lshl_b32 s44, s40, 15')
    k.e('s_lshl_b32 s46, s45, 6')
    k.e('s_add_u32 s44, s44, s46')
    for q in range(2):
        k.vmem(f'buffer_store_dwordx4 {vr(64+4*q,4)}, v5, s[12:15], s44 offen offset:{q*32}')
    k.dump_stamps(W, STAMP + 0xa0000)
    k.label(end)
    k.e('s_endpgm')
    return k, 184, 176, (256, 256, 131072)


if __name__ == '__main__':
    build([gen_k0(), gen_k1(), gen_ko(), gen_k2(), gen_k3(), gen_k4()], 'out.s')
    Kern.STAMPS = True
    ks = [gen_k0(), gen_k1(), gen_ko(), gen_k2(), gen_k3(), gen_k4()]
    build(ks, 'out_st.s')
    import json
    json.dump({str(i): getattr(k[0], 'stamps', []) for i, k in enumerate(ks)}, open('stamps.json', 'w'))
```

```python
from gen_k1 import *


def lane_setup(k, W):
    k.e('v_lshrrev_b32 v2, 6, v0')
    k.e('v_and_b32 v1, 63, v0')
    k.e(f'v_readfirstlane_b32 s{W}, v2')


def tr_cols(k, sig, nat, t):
    k.e(f'v_bfe_u32 v{t}, v1, 4, 1')
    if sig is not None:
        k.e(f'v_and_b32 v{sig}, 1, v1')
        k.e(f'v_lshlrev_b32 v{sig}, 4, v{sig}')
        k.e(f'v_lshl_add_u32 v{sig}, v{t}, 5, v{sig}')
        k.e(f'v_bfe_u32 v{t}, v1, 1, 1')
        k.e(f'v_lshl_add_u32 v{sig}, v{t}, 3, v{sig}')
        k.e(f'v_bfe_u32 v{t}, v1, 4, 1')
    if nat is not None:
        k.e(f'v_and_b32 v{nat}, 3, v1')
        k.e(f'v_lshlrev_b32 v{nat}, 3, v{nat}')
        k.e(f'v_lshl_add_u32 v{nat}, v{t}, 5, v{nat}')


def gen_ko():
    k = Kern('ko_kernel')
    end = k.newlabel('END')
    gemv = k.newlabel('GEMV')
    k.e('s_cmp_ge_u32 s2, 342')
    k.e(f's_cbranch_scc1 {end}')
    k.e('s_load_dwordx2 s[10:11], s[0:1], 96')
    k.e('s_load_dwordx4 s[4:7], s[0:1], 40')
    MB, HP, W = 28, 29, 30
    wg_decode(k, MB, HP)
    lane_setup(k, W)
    k.e('v_lshlrev_b32 v3, 4, v1')
    k.e('v_lshlrev_b32 v4, 2, v1')
    k.e('s_waitcnt lgkmcnt(0)')
    k.srd(24, 's10', 's11', WS_SIZE)
    k.e('s_cmp_ge_u32 s2, 256')
    k.e(f's_cbranch_scc1 {gemv}')
    k.e(f's_mul_i32 s31, s{HP}, {16*KVP_STRIDE}')
    k.e(f's_and_b32 s32, s{W}, 1')
    k.e('s_mul_i32 s33, s32, 2304')
    k.e('s_add_u32 s31, s31, s33')
    k.e(f's_add_u32 s31, s31, {KVP}')
    k.e(f's_lshr_b32 s34, s{W}, 1')
    k.e('s_lshl_b32 s33, s34, 10')
    k.e('s_add_u32 s33, s33, s31')
    k.stamp('start')
    PQ, PZ = 32, 96
    tp = []
    for p in range(16):
        k.vmem(f'buffer_load_dwordx4 {vr(PQ+4*p,4)}, v3, s[24:27], s33 offen')
        tp.append(k.vmem(f'buffer_load_dword v{PZ+p}, v4, s[24:27], s31 offen offset:2048'))
        if p < 15:
            k.e(f's_add_u32 s33, s33, {KVP_STRIDE}')
            k.e(f's_add_u32 s31, s31, {KVP_STRIDE}')
    PH = 112
    k.e('s_lshl_b32 s35, s2, 14')
    k.e(f's_lshl_b32 s36, s{W}, 12')
    k.e('s_add_u32 s35, s35, s36')
    k.e(f's_add_u32 s35, s35, {PHQ}')
    for q in range(4):
        tph = k.vmem(f'buffer_load_dwordx4 {vr(PH+4*q,4)}, v3, s[24:27], s35 offen offset:{q*1024}')
    k.e('v_and_b32 v5, 31, v1')
    k.e('v_lshlrev_b32 v5, 6, v5')
    k.e('v_lshrrev_b32 v6, 5, v1')
    k.e('v_lshl_add_u32 v5, v6, 4, v5')
    k.e('s_lshl_b32 s36, s32, 11')
    k.e('v_add_u32 v7, s36, v5')
    k.e('s_lshl_b32 s37, s34, 3')
    k.e('v_add_u32 v5, s37, v7')
    tr_cols(k, None, 8, 9)
    k.e('v_bfe_u32 v9, v1, 2, 2')
    k.e('v_lshl_add_u32 v9, v6, 3, v9')
    k.e('v_lshl_add_u32 v8, v9, 6, v8')
    k.stamp('issued')
    for p in range(1, 16):
        k.wait(vm=tp[p])
        k.e(f'v_pk_add_f32 {vr(PQ,2)}, {vr(PQ,2)}, {vr(PQ+4*p,2)}')
        k.e(f'v_pk_add_f32 {vr(PQ+2,2)}, {vr(PQ+2,2)}, {vr(PQ+4*p+2,2)}')
        k.e(f'v_add_f32 v{PZ}, v{PZ}, v{PZ+p}')
    k.e(f'v_cvt_pk_bf16_f32 v12, v{PQ}, v{PQ+1}')
    k.e(f'v_cvt_pk_bf16_f32 v13, v{PQ+2}, v{PQ+3}')
    for j in range(4):
        k.e(f'v_cvt_pk_bf16_f32 v{16+j}, v{PZ}, v{PZ}')
    k.ds('ds_write_b64 v5, v[12:13]')
    k.ds('ds_write_b128 v7, v[16:19] offset:32')
    k.wait_all(vm=False)
    k.e('s_barrier')
    k.stamp('bar')
    AF = 32
    ta = {}
    for h in range(2):
        for t in range(2):
            k.ds(f'ds_read_b64_tr_b16 {vr(AF+8*h+4*t,2)}, v8 offset:{h*2048+t*1024}')
            ta[(h, t)] = k.ds(f'ds_read_b64_tr_b16 {vr(AF+8*h+4*t+2,2)}, v8 offset:{h*2048+t*1024+256}')
    D = 64
    k.wait(vm=tph)
    for h in range(2):
        for t in range(2):
            k.wait(lg=ta[(h, t)])
            k.e(f'v_mfma_f32_32x32x16_bf16 {vr(D+16*h,16)}, {vr(AF+8*h+4*t,4)}, {vr(PH+8*t+4*h,4)}, {vr(D+16*h,16) if t else 0}')
    k.e(f's_lshl_b32 s35, s{MB}, 2')
    k.e(f's_add_u32 s35, s35, s{W}')
    k.e('s_lshl_b32 s35, s35, 5')
    k.e(f's_lshl_b32 s36, s{HP}, 1')
    k.e('s_add_u32 s35, s35, s36')
    k.e('s_lshl_b32 s35, s35, 10')
    k.e(f's_add_u32 s35, s35, {OBUF}')
    for h in range(2):
        d = D + 16 * h
        k.e(f'v_add_f32 v{d+8}, 0x358637bd, v{d+8}')
        k.e(f'v_rcp_f32 v{d+8}, v{d+8}')
        for j in range(4):
            k.e(f'v_pk_mul_f32 {vr(d+2*j,2)}, {vr(d+2*j,2)}, {vr(d+8,2)} op_sel_hi:[1,0]')
        for j in range(4):
            k.e(f'v_cvt_pk_bf16_f32 v{d+12+j}, v{d+2*j}, v{d+2*j+1}')
        k.vmem(f'buffer_store_dwordx4 {vr(d+12,4)}, v3, s[24:27], s35 offen offset:{h*1024}')
    k.dump_stamps(W, STAMP + 0x40000)
    k.e('s_endpgm')
    k.flush()
    k.label(gemv)
    k.e('s_sub_u32 s31, s2, 256')
    k.e('s_cmp_ge_u32 s31, 43')
    k.e('s_cselect_b32 s32, 1, 0')
    k.e('s_cselect_b32 s4, s6, s4')
    k.e('s_cselect_b32 s5, s7, s5')
    k.e('s_mul_i32 s33, s32, 43')
    k.e('s_sub_u32 s31, s31, s33')
    k.srd(16, 's4', 's5', 512 * 2752)
    k.e('v_lshrrev_b32 v1, 2, v0')
    k.e('v_and_b32 v2, 3, v0')
    k.e('v_mul_u32_u24 v3, 2752, v1')
    k.e('v_lshl_add_u32 v3, v2, 4, v3')
    k.e('v_lshlrev_b32 v4, 2, v1')
    k.e('s_lshl_b32 s33, s31, 6')
    k.e(f's_mov_b32 s34, {MODF+3*2048}')
    ts = []
    for i in range(8):
        k.vmem(f'buffer_load_dword v{8+i}, v4, s[24:27], s34 offen offset:{i*256}')
        ts.append(k.vmem(f'buffer_load_dword v{16+i}, v4, s[24:27], s34 offen offset:{2048+i*256}'))
    tw = []
    for i in range(8):
        tw.append(k.vmem(f'buffer_load_dwordx4 {vr(64+4*i,4)}, v3, s[16:19], s33 offen'))
        if i < 7:
            k.e(f's_add_u32 s33, s33, {64*2752}')
    for j in range(16):
        k.e(f'v_mov_b32 v{32+j}, 0')
    for i in range(8):
        k.wait(vm=tw[i])
        for j in range(4):
            w = 64 + 4 * i + j
            k.e(f'v_lshlrev_b32 v5, 16, v{w}')
            k.e(f'v_and_b32 v6, 0xffff0000, v{w}')
            k.e(f'v_fmac_f32 v{32+2*j}, v{16+i}, v5')
            k.e(f'v_fmac_f32 v{33+2*j}, v{16+i}, v6')
            k.e(f'v_fmac_f32 v{40+2*j}, v{8+i}, v5')
            k.e(f'v_fmac_f32 v{41+2*j}, v{8+i}, v6')
    k.e('v_lshlrev_b32 v5, 5, v0')
    k.ds('ds_write_b128 v5, v[32:35]')
    k.ds('ds_write_b128 v5, v[36:39] offset:16')
    k.ds('ds_write_b128 v5, v[40:43] offset:8192')
    k.ds('ds_write_b128 v5, v[44:47] offset:8208')
    k.e('v_and_b32 v6, 31, v0')
    k.e('v_lshrrev_b32 v7, 5, v0')
    k.e('v_lshlrev_b32 v7, 11, v7')
    k.e('v_lshl_add_u32 v7, v6, 2, v7')
    k.wait_all(vm=False)
    k.e('s_barrier')
    for i in range(16):
        k.ds(f'ds_read_b32 v{8+i}, v7 offset:{i*128}')
    k.wait_all(vm=False)
    for i in (1, 2, 4, 8):
        for j in range(0, 16, 2 * i):
            k.e(f'v_add_f32 v{8+j}, v{8+j}, v{8+j+i}')
    k.e('v_lshlrev_b32 v5, 2, v0')
    k.ds('ds_write_b32 v5, v8 offset:16384')
    k.wait_all(vm=False)
    k.e('s_barrier')
    k.e('v_cmp_gt_u32 vcc, 32, v0')
    k.e('s_and_saveexec_b64 s[36:37], vcc')
    k.e(f's_cbranch_execz {end}')
    for i in range(8):
        k.ds(f'ds_read_b32 v{8+i}, v5 offset:{16384+i*128}')
    k.wait_all(vm=False)
    for b in (8, 12):
        k.e(f'v_add_f32 v{b}, v{b}, v{b+1}')
        k.e(f'v_add_f32 v{b+2}, v{b+2}, v{b+3}')
        k.e(f'v_add_f32 v{b}, v{b}, v{b+2}')
    for n, b in enumerate((8, 12)):
        bf16r(k, f'v{b+1}', f'v{b}', f'v{b+2}')
        k.e(f'v_sub_f32 v{b}, v{b}, v{b+1}')
        k.e(f'v_cvt_pk_bf16_f32 v{20+n}, v{b+1}, v{b}')
    k.e('v_lshrrev_b32 v5, 4, v0')
    k.e('v_lshlrev_b32 v5, 8, v5')
    k.e('v_bfe_u32 v6, v0, 2, 1')
    k.e('v_lshl_add_u32 v5, v6, 6, v5')
    k.e('v_bfe_u32 v6, v0, 3, 1')
    k.e('v_lshl_add_u32 v5, v6, 5, v5')
    k.e('v_and_b32 v6, 3, v0')
    k.e('v_lshl_add_u32 v5, v6, 3, v5')
    k.e('s_lshl_b32 s33, s31, 9')
    k.e('s_lshl_b32 s34, s32, 7')
    k.e('s_add_u32 s33, s33, s34')
    k.e(f's_add_u32 s33, s33, {EXT8}')
    k.vmem('buffer_store_dwordx2 v[20:21], v5, s[24:27], s33 offen')
    k.label(end)
    k.e('s_endpgm')
    return k, 128, 0, (342, 256, 17408)


def stage_addr(k, dst, t1, t2, rowbytes):
    k.e(f'v_lshrrev_b32 v{t1}, 3, v1')
    k.e(f'v_lshrrev_b32 v{t2}, 4, v1')
    k.e(f'v_xor_b32 v{t2}, v{t2}, v{t1}')
    k.e(f'v_and_b32 v{t2}, 1, v{t2}')
    k.e(f'v_and_b32 v{dst}, 7, v1')
    k.e(f'v_lshlrev_b32 v{dst}, 4, v{dst}')
    k.e(f'v_lshlrev_b32 v{t2}, 6, v{t2}')
    k.e(f'v_xor_b32 v{dst}, v{dst}, v{t2}')
    k.e(f'v_mul_u32_u24 v{t1}, {rowbytes}, v{t1}')
    k.e(f'v_add_u32 v{dst}, v{dst}, v{t1}')


def tr_addr_128(k, a0, a1, sOwn, sBase, t):
    tr_cols(k, a0, None, t)
    k.e(f'v_bfe_u32 v{t}, v1, 2, 2')
    k.e(f'v_lshrrev_b32 v{a1}, 1, v{t}')
    k.e(f'v_xor_b32 v{a1}, v{a1}, v{t}')
    k.e(f'v_xor_b32 v{a1}, s{sOwn}, v{a1}')
    k.e(f'v_and_b32 v{a1}, 1, v{a1}')
    k.e(f'v_lshl_add_u32 v{a0}, v{a1}, 6, v{a0}')
    k.e(f'v_lshl_add_u32 v{a0}, v{t}, 7, v{a0}')
    k.e(f'v_lshrrev_b32 v{t}, 5, v1')
    k.e(f'v_lshl_add_u32 v{a0}, v{t}, 10, v{a0}')
    k.e(f'v_add_u32 v{a0}, s{sBase}, v{a0}')
    k.e(f'v_xor_b32 v{a1}, 64, v{a0}')


def xreduce(k, ACC, W, LRED, T, sT):
    for i in (1, 2, 3):
        k.e(f's_xor_b32 s{sT}, s{W}, {i}')
        k.e(f's_mul_i32 s{sT}, s{sT}, 12288')
        k.e(f's_add_u32 s{sT}, s{sT}, {LRED+(i-1)*4096}')
        k.e(f'v_add_u32 v{T}, s{sT}, v3')
        for q in range(4):
            k.ds(f'ds_write_b128 v{T}, {vr(ACC+16*i+4*q,4)} offset:{q*1024}')
    k.e(f's_mul_i32 s{sT}, s{W}, 12288')
    k.e(f's_add_u32 s{sT}, s{sT}, {LRED}')
    k.e(f'v_add_u32 v2, s{sT}, v3')
    k.wait_all(vm=False)
    k.e('s_barrier')
    tt = []
    for n in range(12):
        tt.append(k.ds(f'ds_read_b128 {vr(T+4*n,4)}, v2 offset:{n*1024}'))
    for n in range(12):
        k.wait(lg=tt[n])
        q = n & 3
        for j in range(2):
            k.e(f'v_pk_add_f32 {vr(ACC+4*q+2*j,2)}, {vr(ACC+4*q+2*j,2)}, {vr(T+4*n+2*j,2)}')


def gen_k2():
    k = Kern('k2_wo_kernel')
    end = k.newlabel('END')
    k.e('s_cmp_ge_u32 s2, 256')
    k.e(f's_cbranch_scc1 {end}')
    k.e('s_load_dwordx2 s[4:5], s[0:1], 0')
    k.e('s_load_dwordx2 s[6:7], s[0:1], 24')
    k.e('s_load_dwordx2 s[10:11], s[0:1], 96')
    MB, J, W = 28, 29, 30
    wg_decode(k, MB, J)
    lane_setup(k, W)
    k.e('v_lshlrev_b32 v3, 4, v1')
    stage_addr(k, 4, 5, 6, 1024)
    TH, CB, TBO, NBO = 31, 32, 33, 34
    k.e(f's_and_b32 s{TH}, s{J}, 1')
    k.e(f's_lshr_b32 s{CB}, s{J}, 1')
    k.e(f's_and_b32 s{TBO}, s{W}, 1')
    k.e(f's_lshr_b32 s{NBO}, s{W}, 1')
    k.e('s_waitcnt lgkmcnt(0)')
    k.srd(12, 's4', 's5', 2048 * 1024)
    k.srd(16, 's6', 's7', 512 * 1024)
    k.srd(24, 's10', 's11', WS_SIZE)
    k.e(f's_lshl_b32 s35, s{W}, 17')
    k.e(f's_lshl_b32 s36, s{CB}, 7')
    k.e('s_add_u32 s35, s35, s36')
    k.e(f's_lshl_b32 s37, s{W}, 14')
    k.e('s_mov_b32 m0, s37')
    k.e(f's_lshl_b32 s38, s{MB}, 2')
    k.e(f's_lshl_b32 s39, s{TH}, 1')
    k.e('s_add_u32 s38, s38, s39')
    k.e(f's_add_u32 s40, s38, s{TBO}')
    k.e('s_xor_b32 s41, s40, 1')
    for s_ in (40, 41):
        k.e(f's_lshl_b32 s{s_+2}, s{s_}, 15')
        k.e(f's_lshl_b32 s39, s{W}, 13')
        k.e(f's_add_u32 s{s_+2}, s{s_+2}, s39')
        k.e(f's_add_u32 s{s_+2}, s{s_+2}, {OBUF}')
    k.stamp('start')
    OF = 0
    tl = {}
    for s in range(8):
        for h in range(2):
            k.vmem('buffer_load_dwordx4 v4, s[16:19], s35 offen lds')
            k.e('s_add_u32 s35, s35, 8192')
            k.e('s_add_u32 m0, m0, 1024')
        if s == 4:
            k.e('s_add_u32 s42, s42, 4096')
            k.e('s_add_u32 s43, s43, 4096')
        for tb in range(2):
            tl[s] = k.vmem(f'buffer_load_dwordx4 {ar(OF+8*s+4*tb,4)}, v3, s[24:27], s{42+tb} offen offset:{(s&3)*1024}')
    XR, GAr, S2r = 96, 104, 120
    k.e('v_and_b32 v5, 31, v1')
    k.e('v_lshlrev_b32 v5, 10, v5')
    k.e('v_lshrrev_b32 v6, 5, v1')
    k.e('v_lshl_add_u32 v5, v6, 4, v5')
    k.e('s_lshl_b32 s44, s40, 15')
    k.e(f's_lshl_b32 s45, s{CB}, 1')
    k.e(f's_add_u32 s45, s45, s{NBO}')
    k.e('s_lshl_b32 s46, s45, 6')
    k.e('s_add_u32 s44, s44, s46')
    for q in range(2):
        k.vmem(f'buffer_load_dwordx4 {vr(XR+4*q,4)}, v5, s[12:15], s44 offen offset:{q*32}')
    k.e('v_lshlrev_b32 v7, 5, v6')
    k.e('s_lshl_b32 s46, s45, 7')
    k.e(f's_add_u32 s46, s46, {MODF+2*2048}')
    k.e(f's_add_u32 s47, s46, {2*2048}')
    for q in range(2):
        for h in range(2):
            k.vmem(f'buffer_load_dwordx4 {vr(GAr+8*q+4*h,4)}, v7, s[24:27], s46 offen offset:{q*64+h*16}')
            tep = k.vmem(f'buffer_load_dwordx4 {vr(S2r+8*q+4*h,4)}, v7, s[24:27], s47 offen offset:{q*64+h*16}')
    k.stamp('issued')
    tr_addr_128(k, 8, 9, NBO, 37, 10)
    ACC = 32
    FB = 16
    for s in range(8):
        k.wait(vm=tl[s])
        if s in (0, 4):
            k.stamp(f's{s}')
        st = s & 1
        tt = []
        for sa in range(2):
            k.ds(f'ds_read_b64_tr_b16 {vr(FB+8*st+4*sa,2)}, v{8+sa} offset:{s*2048}')
            tt.append(k.ds(f'ds_read_b64_tr_b16 {vr(FB+8*st+4*sa+2,2)}, v{8+sa} offset:{s*2048+512}'))
        for sa in range(2):
            k.wait(lg=tt[sa])
            for sb in range(2):
                a = ACC + 16 * (2 * sa + sb)
                k.e(f'v_mfma_f32_32x32x16_bf16 {vr(a,16)}, {vr(FB+8*st+4*sa,4)}, {ar(OF+8*s+4*sb,4)}, {vr(a,16) if s else 0}')
    k.stamp('loop')
    xreduce(k, ACC, W, 65536, 136, 48)
    k.stamp('red')
    k.wait(vm=tep)
    X = 48
    for j in range(8):
        k.e(f'v_lshlrev_b32 v{X+2*j}, 16, v{XR+j}')
        k.e(f'v_and_b32 v{X+2*j+1}, 0xffff0000, v{XR+j}')
    for j in range(8):
        k.e(f'v_pk_fma_f32 {vr(ACC+2*j,2)}, {vr(ACC+2*j,2)}, {vr(GAr+2*j,2)}, {vr(X+2*j,2)}')
    k.e('s_lshl_b32 s48, s2, 14')
    k.e(f's_lshl_b32 s49, s{W}, 12')
    k.e('s_add_u32 s48, s48, s49')
    k.e(f's_add_u32 s48, s48, {X1K}')
    for q in range(4):
        k.vmem(f'buffer_store_dwordx4 {vr(ACC+4*q,4)}, v3, s[24:27], s48 offen offset:{q*1024}')
    for j in range(8):
        k.e(f'v_pk_mul_f32 {vr(X+2*j,2)}, {vr(ACC+2*j,2)}, {vr(S2r+2*j,2)}')
    for j in range(8):
        k.e(f'v_cvt_pk_bf16_f32 v{64+j}, v{X+2*j}, v{X+2*j+1}')
    k.e('s_lshl_b32 s48, s40, 15')
    k.e('s_lshl_b32 s49, s45, 11')
    k.e('s_add_u32 s48, s48, s49')
    k.e(f's_add_u32 s48, s48, {X1S}')
    for q in range(2):
        k.vmem(f'buffer_store_dwordx4 {vr(64+4*q,4)}, v3, s[24:27], s48 offen offset:{q*1024}')
    k.e(f'v_pk_add_f32 v[72:73], {vr(ACC,2)}, {vr(ACC+2,2)}')
    k.e(f'v_pk_mul_f32 v[74:75], {vr(ACC,2)}, {vr(ACC,2)}')
    for j in range(1, 8):
        if j >= 2:
            k.e(f'v_pk_add_f32 v[72:73], v[72:73], {vr(ACC+2*j,2)}')
        k.e(f'v_pk_fma_f32 v[74:75], {vr(ACC+2*j,2)}, {vr(ACC+2*j,2)}, v[74:75]')
    k.e('v_add_f32 v72, v72, v73')
    k.e('v_add_f32 v74, v74, v75')
    k.e('v_permlane32_swap_b32 v72, v74')
    k.e('v_add_f32 v72, v72, v74')
    k.e('v_and_b32 v5, 31, v1')
    k.e('v_lshlrev_b32 v5, 2, v5')
    k.e('v_lshl_add_u32 v5, v6, 13, v5')
    k.e('s_lshl_b32 s48, s45, 14')
    k.e('s_lshl_b32 s49, s40, 7')
    k.e('s_add_u32 s48, s48, s49')
    k.e(f's_add_u32 s48, s48, {ST2}')
    k.vmem('buffer_store_dword v72, v5, s[24:27], s48 offen')
    k.dump_stamps(W, STAMP + 0x60000)
    k.label(end)
    k.e('s_endpgm')
    return k, 184, 64, (256, 256, 65536 + 49152)


if __name__ == '__main__':
    build([gen_k0(), gen_k1(), gen_ko(), gen_k2()], 'out.s')
```

```python
import json
from gen_k34 import *

MP1 = 0x0000
MP2 = 0x8000
KVB = 0x20000
ZP = 0xA0000
FLAG = 0x140000
UPART = 0x1A0000
F_A, F_B, F_C, F_D, F_E = 0, 1, 2, 3, 4
SPIN_LIMIT = 100000
S_X, S_WQ, S_PHI, S_WS, S_WO, S_G, S_U, S_DN, S_OUT = 12, 16, 20, 24, 36, 40, 44, 48, 52
MB, J, W, NONCE = 28, 29, 30, 65
KNAME = NAME + '_kernel'


def srdname(b):
    return f's[{b}:{b+3}]'


def publish(k, flags):
    k.wait_all()
    k.e('s_barrier')
    skip = k.newlabel('PUB')
    k.e(f's_cmp_lg_u32 s{W}, 0')
    k.e(f's_cbranch_scc1 {skip}')
    k.e('s_mov_b64 exec, 1')
    k.e(f'v_mov_b32 v2, s{NONCE}')
    for ph, g, m_ in flags:
        k.e(f's_lshl_b32 s56, s{g}, 4')
        k.e(f's_add_u32 s56, s56, s{m_}')
        k.e('s_lshl_b32 s56, s56, 8')
        k.e(f's_add_u32 s56, s56, {FLAG+ph*65536}')
        k.e(f'buffer_store_dword v2, off, {srdname(S_WS)}, s56 sc1')
    k.e('s_mov_b64 exec, -1')
    k.label(skip)


def poll(k, ph, g):
    k.e(f's_lshl_b32 s56, s{g}, 12')
    k.e(f's_add_u32 s56, s56, {FLAG+ph*65536}')
    k.e('s_mov_b32 s57, 0')
    L = k.newlabel('POLL')
    D = k.newlabel('POLLD')
    k.flush()
    k.label(L)
    k.e(f'buffer_load_dword v2, v4, {srdname(S_WS)}, s56 offen sc1')
    k.e('s_add_u32 s57, s57, 1')
    k.e('s_waitcnt vmcnt(0)')
    k.e(f'v_cmp_ne_u32 vcc, s{NONCE}, v2')
    k.e(f's_cbranch_vccz {D}')
    k.e(f's_cmp_lt_u32 s57, {SPIN_LIMIT}')
    k.e(f's_cbranch_scc1 {L}')
    k.label(D)
    k.vm_done = k.vm


def poll_nonce(k, srd):
    L = k.newlabel('PN')
    D = k.newlabel('PND')
    k.e('s_mov_b32 s57, 0')
    k.flush()
    k.label(L)
    k.e(f'buffer_load_dword v2, off, {srdname(srd)}, 0 sc1')
    k.e('s_add_u32 s57, s57, 1')
    k.e('s_waitcnt vmcnt(0)')
    k.e(f'v_readfirstlane_b32 s{NONCE}, v2')
    k.e(f's_cmp_lg_u32 s{NONCE}, 0')
    k.e(f's_cbranch_scc1 {D}')
    k.e(f's_cmp_lt_u32 s57, {SPIN_LIMIT}')
    k.e(f's_cbranch_scc1 {L}')
    k.label(D)
    k.flush()
    k.vm_done = k.vm


def gen_main():
    k = Kern(KNAME)
    end = 'L_END'
    k.e('s_cmp_ge_u32 s2, 256')
    k.e(f's_cbranch_scc1 {end}')
    k.rt_begin()
    k.e('s_load_dwordx8 s[68:75], s[0:1], 0')
    k.e('s_load_dwordx8 s[76:83], s[0:1], 40')
    k.e('s_load_dwordx8 s[84:91], s[0:1], 72')
    k.e('s_memrealtime s[92:93]')
    k.e(f's_bfe_u32 s{MB}, s2, 0x20001')
    k.e(f's_lshl_b32 s{MB}, s{MB}, 2')
    k.e('s_bfe_u32 s3, s2, 0x20003')
    k.e(f's_or_b32 s{MB}, s{MB}, s3')
    k.e(f's_and_b32 s{J}, s2, 1')
    k.e(f's_lshl_b32 s{J}, s{J}, 3')
    k.e('s_lshr_b32 s3, s2, 5')
    k.e(f's_or_b32 s{J}, s{J}, s3')
    lane_setup(k, W)
    k.e('v_lshlrev_b32 v3, 4, v1')
    k.e('v_and_b32 v4, 15, v1')
    k.e('v_lshlrev_b32 v4, 8, v4')
    k.e('s_getpc_b64 s[32:33]')
    k.label('L_PC')
    k.e('s_lshr_b32 s3, s2, 3')
    k.e('s_lshl_b32 s31, s3, 11')
    k.e('v_lshlrev_b32 v5, 3, v0')
    k.e('v_add_u32 v5, s31, v5')
    k.e('v_min_u32 v5, L_CODE_END-L_PC-8, v5')
    k.e('v_and_b32 v5, 0xfffffffc, v5')
    k.vmem('global_load_dwordx2 v[240:241], v5, s[32:33]')
    k.e('v_lshrrev_b32 v8, 3, v1')
    k.e('v_and_b32 v9, 7, v1')
    k.e('v_mul_u32_u24 v6, 6144, v8')
    k.e('v_lshl_add_u32 v6, v9, 4, v6')
    k.e('v_lshlrev_b32 v7, 1, v8')
    k.e('s_waitcnt lgkmcnt(0)')
    k.srd(S_WS, 's90', 's91', WS_SIZE)
    S_DBG, S_C, S_WM = 60, 4, 8
    k.srd(S_DBG, 's88', 's89', 256)
    nn = k.newlabel('NONONCE')
    k.e('s_cmp_lg_u32 s2, 0')
    k.e(f's_cbranch_scc1 {nn}')
    k.e(f's_cmp_lg_u32 s{W}, 0')
    k.e(f's_cbranch_scc1 {nn}')
    k.e('s_or_b32 s92, s92, 1')
    k.e('v_mov_b32 v2, s92')
    k.e('s_mov_b64 exec, 1')
    k.e(f'buffer_store_dword v2, off, {srdname(S_DBG)}, 0 sc1')
    k.e('s_mov_b64 exec, -1')
    k.label(nn)
    k.srd(S_X, 's68', 's69', 2048 * 1024)
    k.srd(S_WQ, 's70', 's71', 512 * 3072)
    k.stamp('start')
    k.e(f's_lshl_b32 s31, s{MB}, 17')
    k.e(f's_lshl_b32 s32, s{W}, 15')
    k.e('s_add_u32 s31, s31, s32')
    k.e(f's_lshl_b32 s32, s{W}, 13')
    XV = 20
    k.e('v_lshrrev_b32 v14, 4, v1')
    k.e('v_and_b32 v15, 15, v1')
    k.e('v_xor_b32 v15, v15, v14')
    k.e('v_lshlrev_b32 v15, 4, v15')
    k.e(f'v_lshl_add_u32 v{XV}, v14, 10, v15')
    for n in range(1, 4):
        k.e(f'v_xor_b32 v{XV+n}, {64*n}, v{XV}')
    tX = {}

    def xdma(r, c):
        for n in range(8):
            r.e(f's_add_u32 s56, s31, {n*4096+c*256}')
            r.e(f's_add_u32 m0, s32, {(c&1)*32768+n*1024}')
            tX[c] = r.vmem(f'buffer_load_dwordx4 v{XV+(n&3)}, {srdname(S_X)}, s56 offen lds')
    nog = k.newlabel('NOGEMV')
    nog0 = k.newlabel('NOGEMV0')
    k.e('s_cmp_ge_u32 s2, 192')
    k.e(f's_cbranch_scc1 {nog0}')
    k.srd(S_C, 's82', 's83', 1028)
    k.srd(S_WM, 's84', 's85', 512 * 3072 * 2)
    k.e('s_and_b32 s33, s2, 3')
    k.e('s_lshr_b32 s34, s2, 2')
    k.e('s_lshl_b32 s58, s33, 2')
    k.e(f's_add_u32 s58, s58, s{W}')
    k.e('s_lshl_b32 s58, s58, 5')
    k.e('s_lshl_b32 s59, s58, 1')
    k.e('s_mul_i32 s58, s58, 6144')
    k.e('s_lshl_b32 s35, s34, 7')
    k.e('s_add_u32 s58, s58, s35')
    for i in range(4):
        tc = k.vmem(f'buffer_load_ushort v{32+i}, v7, {srdname(S_C)}, s59 offen offset:{i*16}')
    tw = []
    for i in range(4):
        tw.append(k.vmem(f'buffer_load_dwordx4 {vr(48+4*i,4)}, v6, {srdname(S_WM)}, s58 offen'))
        if i < 3:
            k.e(f's_add_u32 s58, s58, {8*6144}')
    k.label(nog0)
    xdma(k, 0)
    k.e('s_cmp_ge_u32 s2, 192')
    k.e(f's_cbranch_scc1 {nog}')
    for j in range(8):
        k.e(f'v_mov_b32 v{40+j}, 0')
    k.e(f's_mov_b32 s35, 0x{LOG2E:x}')
    k.wait(vm=tc)
    for i in range(4):
        k.e(f'v_lshlrev_b32 v{32+i}, 16, v{32+i}')
    for i in range(4):
        k.e(f'v_mul_f32 v{36+i}, s35, v{32+i}')
    for i in range(4):
        k.e(f'v_exp_f32 v{36+i}, -v{36+i}')
    for i in range(4):
        k.e(f'v_add_f32 v{36+i}, 1.0, v{36+i}')
    for i in range(4):
        k.e(f'v_rcp_f32 v12, v{36+i}')
        k.e(f'v_mul_f32 v13, v{32+i}, v12')
        k.e(f'v_fma_f32 v14, -v13, v{36+i}, v{32+i}')
        k.e('v_fma_f32 v14, v14, v12, v13')
        k.e('v_cmp_class_f32 vcc, v14, 3')
        k.e(f'v_cndmask_b32 v{32+i}, v14, v13, vcc')
    for i in range(4):
        bf16r(k, f'v{32+i}', f'v{32+i}', f'v{36+i}')
    for i in range(4):
        k.wait(vm=tw[i])
        for j in range(4):
            w_ = 48 + 4 * i + j
            k.e(f'v_lshlrev_b32 v12, 16, v{w_}')
            k.e(f'v_and_b32 v13, 0xffff0000, v{w_}')
            k.e(f'v_fmac_f32 v{40+2*j}, v{32+i}, v12')
            k.e(f'v_fmac_f32 v{41+2*j}, v{32+i}, v13')
    for j in range(4):
        k.e(f'v_permlane32_swap_b32 v{40+j}, v{44+j}')
    for j in range(4):
        k.e(f'v_add_f32 v{40+j}, v{40+j}, v{44+j}')
    for j in range(2):
        k.e(f'v_permlane16_swap_b32 v{40+j}, v{42+j}')
    for j in range(2):
        k.e(f'v_add_f32 v{40+j}, v{40+j}, v{42+j}')
    for j in range(2):
        k.e(f'v_add_f32_dpp v{40+j}, v{40+j}, v{40+j} row_ror:8 row_mask:0xf bank_mask:0xf')
    L_G = 131072
    k.e('v_lshlrev_b32 v12, 5, v9')
    k.e('v_lshrrev_b32 v13, 5, v1')
    k.e('v_lshl_add_u32 v12, v13, 4, v12')
    k.e('v_bfe_u32 v13, v1, 4, 1')
    k.e('v_lshl_add_u32 v12, v13, 3, v12')
    k.e(f's_lshl_b32 s5, s{W}, 8')
    k.e(f's_add_u32 s5, s5, {L_G}')
    k.e('v_add_u32 v12, s5, v12')
    k.ds('ds_write_b64 v12, v[40:41]')
    k.wait_all(vm=False)
    k.e('s_barrier')
    k.e(f's_cmp_lg_u32 s{W}, 0')
    k.e(f's_cbranch_scc1 {nog}')
    k.e('v_lshlrev_b32 v12, 2, v1')
    k.e(f'v_add_u32 v12, {L_G}, v12')
    for i in range(4):
        k.ds(f'ds_read_b32 v{40+i}, v12 offset:{i*256}')
    k.e('s_and_b32 s4, s34, 7')
    k.e('s_lshl_b32 s4, s4, 12')
    k.e('s_cmp_lt_u32 s34, 8')
    k.e('s_cselect_b32 s5, 32, 0')
    k.e('s_add_u32 s4, s4, s5')
    k.e(f's_add_u32 s4, s4, {MP1}')
    k.e('s_sub_u32 s5, s34, 16')
    k.e('s_lshl_b32 s5, s5, 11')
    k.e(f's_add_u32 s5, s5, {MP2}')
    k.e('s_cmp_lt_u32 s34, 16')
    k.e('s_cselect_b32 s4, s4, s5')
    k.e('s_cselect_b32 s5, 6, 5')
    k.e('s_lshl_b32 s6, s33, 3')
    k.e('s_add_u32 s4, s4, s6')
    k.e('v_lshlrev_b32 v13, s5, v1')
    poll_nonce(k, S_DBG)
    k.wait_all(vm=False)
    k.e('v_add_f32 v40, v40, v41')
    k.e('v_add_f32 v42, v42, v43')
    k.e('v_add_f32 v40, v40, v42')
    k.e(f'v_mov_b32 v41, s{NONCE}')
    k.e(f'buffer_store_dwordx2 v[40:41], v13, {srdname(S_WS)}, s4 offen sc1')
    k.flush()
    k.label(nog)
    k.vm_done = 0
    k.lg_done = k.lg
    k.stamp('gemv')
    xdma(k, 1)
    k.e('v_lshrrev_b32 v8, 2, v1')
    k.e('v_and_b32 v9, 3, v1')
    k.e('v_mul_u32_u24 v6, 3072, v8')
    k.e('v_lshl_add_u32 v6, v9, 4, v6')
    k.e(f's_mul_i32 s33, s{W}, {32*3072}')
    k.e(f's_lshl_b32 s34, s{J}, 6')
    k.e('s_add_u32 s33, s33, s34')
    WR, WQR, STR = 32, 96, 128

    def wkv(r, c):
        for i in range(2):
            r.e(f's_add_u32 s4, s33, {(128*c+16*i)*3072}')
            for seg in (1, 2):
                r.vmem(f'buffer_load_dwordx4 {vr(WR+16*c+8*i+4*(seg-1),4)}, v6, {srdname(S_WQ)}, s4 offen offset:{seg*1024}')
    wkv(k, 0)
    k.srd(S_PHI, 's72', 's73', 32 * 512 + 4)
    k.srd(S_WO, 's74', 's75', 512 * 1024)
    k.srd(S_G, 's76', 's77', 512 * 2752)
    k.srd(S_U, 's78', 's79', 512 * 2752)
    k.srd(S_DN, 's80', 's81', 1376 * 1024)
    k.srd(S_OUT, 's86', 's87', 2048 * 1024)
    PHI = 248
    k.e('v_bfe_u32 v14, v1, 2, 1')
    k.e('v_lshlrev_b32 v14, 9, v14')
    k.e('v_lshrrev_b32 v15, 5, v1')
    k.e('v_lshl_add_u32 v14, v15, 8, v14')
    k.e('v_bfe_u32 v15, v1, 3, 2')
    k.e('v_lshl_add_u32 v14, v15, 3, v14')
    k.e('v_lshl_add_u32 v14, v9, 1, v14')
    XA = 144
    k.e('v_and_b32 v12, 31, v1')
    k.e('v_lshrrev_b32 v13, 5, v1')
    k.e('v_and_b32 v2, 15, v1')
    k.e('v_xor_b32 v2, v2, v13')
    k.e('v_lshlrev_b32 v2, 4, v2')
    k.e('v_lshl_add_u32 v2, v12, 8, v2')
    k.e('v_add_u32 v2, s32, v2')
    for s in range(8):
        k.e(f'v_xor_b32 v{XA+s}, {2*s*16}, v2')
    SA = 24
    for j in range(4):
        k.e(f'v_mov_b32 v{SA+j}, 0')
    k.e('s_mov_b32 s6, 0x3f803f80')
    k.e(f's_lshl_b32 s10, s{W}, 11')
    k.e(f's_add_u32 s10, s10, {MP1}')
    wkv(k, 1)
    k.stamp('issued')
    TMP, MPR = 160, 216
    TK = {}

    def mp1_loads(r):
        t = None
        for n in range(8):
            if (n & 1) == 0:
                r.e(f's_add_u32 s4, s10, {(n>>1)*8192}')
            t = r.vmem(f'buffer_load_dwordx4 {vr(MPR+4*n,4)}, v3, {srdname(S_WS)}, s4 offen offset:{(n&1)*1024} sc1')
        return t
    for c in range(4):
        k.wait(vm=tX[c].v if isinstance(tX[c], Rec.T) else tX[c])
        tk = []
        for s8 in range(8):
            k.ds(f'ds_read_b128 {ar(4*(8*c+s8),4)}, v{XA+s8} offset:{(c&1)*32768}')
            tk.append(k.ds(f'ds_read_b128 {vr(TMP+4*s8,4)}, v{XA+s8} offset:{(c&1)*32768}'))
        k.wait(lg=tk[-1])
        r = Rec(k)
        for s8 in range(8):
            for j in range(4):
                rr = TMP + 4 * s8 + j
                r.e(f'v_dot2c_f32_bf16 v{SA+(j&1)}, s6, v{rr}')
                r.e(f'v_dot2c_f32_bf16 v{SA+2+(j&1)}, v{rr}, v{rr}')
        r2 = Rec(k)
        if c < 2:
            xdma(r2, c + 2)
            wkv(r2, c + 2)
        if c == 2:
            TK['n'] = r2.vmem(f'buffer_load_dword v15, off, {srdname(S_DBG)}, 0 sc1')
            TK['mp'] = mp1_loads(r2)
        if c == 3:
            for cc in range(4):
                for i in range(2):
                    r2.e(f's_add_u32 s4, s33, {(128*cc+16*i)*3072}')
                    r2.vmem(f'buffer_load_dwordx4 {vr(WQR+4*(2*cc+i),4)}, v6, {srdname(S_WQ)}, s4 offen')
            r2.e(f's_lshl_b32 s5, s{J}, 10')
            for e in range(8):
                TK['phi'] = r2.vmem(f'buffer_load_ushort v{PHI+(e>>1)+4*(e&1)}, v14, {srdname(S_PHI)}, s5 offen offset:{e*32}')
        interleave(r.ops, r2.ops)
    k.stamp('xfrag')
    k.e(f'v_add_f32 v{SA}, v{SA}, v{SA+1}')
    k.e(f'v_add_f32 v{SA+2}, v{SA+2}, v{SA+3}')
    k.e(f'v_mov_b32 v{SA+1}, v{SA}')
    k.e(f'v_mov_b32 v{SA+3}, v{SA+2}')
    k.e(f'v_permlane32_swap_b32 v{SA}, v{SA+1}')
    k.e(f'v_permlane32_swap_b32 v{SA+2}, v{SA+3}')
    k.e(f'v_add_f32 v{SA}, v{SA}, v{SA+1}')
    k.e(f'v_add_f32 v{SA+2}, v{SA+2}, v{SA+3}')
    k.e(f'v_mul_f32 v{SA}, 0x3b000000, v{SA}')
    k.e(f'v_mul_f32 v{SA+2}, 0x3b000000, v{SA+2}')
    k.e(f'v_fma_f32 v{SA+2}, -v{SA}, v{SA}, v{SA+2}')
    k.e(f'v_max_f32 v{SA+2}, 0, v{SA+2}')
    bf16r(k, f'v{SA+2}', f'v{SA+2}', 'v10')
    k.e(f'v_add_f32 v{SA+2}, 0x3727c5ac, v{SA+2}')
    bf16r(k, f'v{SA+2}', f'v{SA+2}', 'v10')
    k.e(f'v_sqrt_f32 v{SA+2}, v{SA+2}')
    XE, RS, RR = 28, 24, 144
    k.e(f'v_cvt_pk_bf16_f32 v{XE}, -v{SA}, -v{SA}')
    k.e(f'v_cvt_pk_bf16_f32 v{XE+1}, v{SA+2}, v{SA+2}')
    k.e(f'v_mov_b32 v{XE+2}, v{XE}')
    k.e(f'v_mov_b32 v{XE+3}, v{XE+1}')
    k.e(f'v_lshlrev_b32 v{SA+2}, 16, v{XE+1}')
    k.e(f'v_rcp_f32 v{RS}, v{SA+2}')
    L_KV = 65536
    L_PH = L_KV + 33 * 2048
    L_VF = L_PH + 20480
    L_RBx = L_VF + 8192
    L_Q, L_UP = 65536, 102400
    L_KVT = 153600
    L_EXT = 161792
    L_MV, L_MVB = 115200, 116224
    k.e('v_and_b32 v13, 31, v1')
    k.e('v_lshlrev_b32 v13, 2, v13')
    k.e(f's_lshl_b32 s4, s{W}, 7')
    k.e(f's_add_u32 s4, s4, {L_RBx}')
    k.e('v_add_u32 v13, s4, v13')
    k.ds(f'ds_write_b32 v13, v{RS}')
    k.e('v_lshrrev_b32 v14, 5, v1')
    k.e('v_lshlrev_b32 v14, 4, v14')
    k.e('v_add_u32 v14, s4, v14')
    k.wait_all(vm=False)
    for a in range(4):
        k.ds(f'ds_read_b128 {vr(RR+4*a,4)}, v14 offset:{a*32}')
    k.wait(vm=TK['n'].v)
    k.e(f'v_readfirstlane_b32 s{NONCE}, v15')
    stage_addr(k, 10, 11, 12, 1024)
    CB, TH, TBO, NBO = 31, 32, 33, 34
    k.e(f's_and_b32 s{CB}, s{J}, 7')
    k.e(f's_lshr_b32 s{TH}, s{J}, 3')
    k.e(f's_and_b32 s{TBO}, s{W}, 1')
    k.e(f's_lshr_b32 s{NBO}, s{W}, 1')
    WKa, WVa, WQa, AK, AV, AQ, NATC = 16, 17, 18, 19, 21, 23, 5
    k.e('v_lshrrev_b32 v14, 3, v1')
    k.e('v_xor_b32 v14, v14, v8')
    k.e('v_and_b32 v14, 1, v14')
    k.e('v_lshlrev_b32 v15, 7, v8')
    k.e('v_lshl_add_u32 v15, v9, 4, v15')
    k.e(f's_lshl_b32 s4, s{W}, 12')
    k.e(f's_add_u32 s4, s4, {L_KV}')
    k.e('v_add_u32 v15, s4, v15')
    k.e(f'v_lshl_add_u32 v{WKa}, v14, 6, v15')
    k.e(f'v_xor_b32 v{WVa}, 64, v{WKa}')
    k.e(f's_lshl_b32 s4, s{W}, 11')
    k.e(f's_add_u32 s4, s4, {L_Q}')
    k.e(f'v_add_u32 v{WQa}, s4, v3')
    tr_cols(k, 14, NATC, 15)
    k.e('v_lshrrev_b32 v15, 5, v1')
    k.e('v_bfe_u32 v2, v1, 2, 2')
    k.e('v_lshl_add_u32 v15, v15, 3, v2')
    k.e('v_lshrrev_b32 v13, 1, v2')
    k.e('v_xor_b32 v13, v13, v2')
    k.e('v_and_b32 v13, 1, v13')
    k.e(f'v_lshl_add_u32 v{AK}, v15, 7, v14')
    k.e(f'v_lshl_add_u32 v{AK}, v13, 6, v{AK}')
    k.e(f'v_add_u32 v{AK}, {L_KV}, v{AK}')
    k.e(f'v_add_u32 v{AK+1}, 0x8000, v{AK}')
    k.e('v_xor_b32 v13, 1, v13')
    k.e(f'v_lshl_add_u32 v{AV}, v15, 7, v{NATC}')
    k.e(f'v_lshl_add_u32 v{AV}, v13, 6, v{AV}')
    k.e(f'v_add_u32 v{AV}, {L_KV}, v{AV}')
    k.e(f'v_add_u32 v{AV+1}, 0x8000, v{AV}')
    k.e(f'v_lshl_add_u32 v{AQ}, v15, 6, v14')
    k.e(f'v_add_u32 v{AQ}, {L_Q}, v{AQ}')
    ACC = 160
    U, Pp, Qq = 192, 200, 208
    for j in range(32):
        k.e(f'v_mov_b32 v{ACC+j}, 0')
    k.e('s_mov_b32 s6, 0x00003f80')
    k.e('s_mov_b32 s7, 0x3f800000')
    k.e(f's_mov_b32 s8, 0x{LOG2E:x}')
    k.e(f's_mov_b32 s9, 0x{LOG2E:x}')
    AccK, AccV = 216, 232
    FBa, NST = 128, 3
    k.stamp('pre0')
    L0 = k.newlabel('P0')
    C0 = k.newlabel('P0C')
    D0 = k.newlabel('P0D')
    k.e('s_mov_b32 s57, 0')
    k.wait(vm=TK['mp'].v)
    k.e(f's_branch {C0}')
    k.flush()
    k.label(L0)
    k.e(f'buffer_load_dword v15, off, {srdname(S_DBG)}, 0 sc1')
    for n in range(8):
        if (n & 1) == 0:
            k.e(f's_add_u32 s4, s10, {(n>>1)*8192}')
        k.e(f'buffer_load_dwordx4 {vr(MPR+4*n,4)}, v3, {srdname(S_WS)}, s4 offen offset:{(n&1)*1024} sc1')
    k.e('s_add_u32 s57, s57, 1')
    k.e('s_waitcnt vmcnt(0)')
    k.e(f'v_readfirstlane_b32 s{NONCE}, v15')
    k.flush()
    k.label(C0)
    k.e(f's_cmp_ge_u32 s57, {SPIN_LIMIT}')
    k.e(f's_cbranch_scc1 {D0}')
    k.e(f's_cmp_eq_u32 s{NONCE}, 0')
    k.e(f's_cbranch_scc1 {L0}')
    k.e(f'v_xor_b32 v12, s{NONCE}, v{MPR+1}')
    for n in range(1, 16):
        k.e(f'v_xor_b32 v13, s{NONCE}, v{MPR+2*n+1}')
        k.e('v_or_b32 v12, v12, v13')
    k.e('v_cmp_ne_u32 vcc, 0, v12')
    k.e(f's_cbranch_vccnz {L0}')
    k.label(D0)
    k.stamp('sync0')
    for n in range(8):
        k.e(f'v_add_f32 v{MPR+4*n}, v{MPR+4*n}, v{MPR+4*n+2}')
    for n in range(8):
        k.e(f'v_add_f32_dpp v{MPR+4*n}, v{MPR+4*n}, v{MPR+4*n} quad_perm:[1,0,3,2] row_mask:0xf bank_mask:0xf')
    for n in range(8):
        k.e(f'v_cvt_pk_bf16_f32 v{MPR+4*n}, v{MPR+4*n}, v{MPR+4*n}')
    for n in range(8):
        k.e(f'v_lshlrev_b32 v{MPR+4*n}, 16, v{MPR+4*n}')
    for n in range(8):
        k.e(f'v_add_f32 v{MPR+4*n+1}, 1.0, v{MPR+4*n}')
    for n in range(8):
        k.e(f'v_cvt_pk_bf16_f32 v{MPR+4*n+1}, v{MPR+4*n+1}, v{MPR+4*n+1}')
    for n in range(8):
        k.e(f'v_lshlrev_b32 v{MPR+4*n+1}, 16, v{MPR+4*n+1}')
    for n in range(8):
        k.e(f'v_mov_b32_dpp v{STR+2*n+1}, v{MPR+4*n} quad_perm:[2,2,2,2] row_mask:0xf bank_mask:0xf')
    for n in range(8):
        k.e(f'v_mov_b32_dpp v{STR+2*n}, v{MPR+4*n+1} quad_perm:[0,0,0,0] row_mask:0xf bank_mask:0xf')

    def prep(r, w, st, A, addr, off, par, plain=False):
        for j in range(4):
            r.e(f'v_lshlrev_b32 v{U+2*j}, 16, v{w+j}')
            r.e(f'v_and_b32 v{U+2*j+1}, 0xffff0000, v{w+j}')
        q = Qq + 4 * par
        if plain:
            for j in range(8):
                r.e(f'v_mul_f32 v{Pp+j}, v{st}, v{U+j}')
            for j in range(4):
                r.e(f'v_cvt_pk_bf16_f32 v{q+j}, v{Pp+2*j}, v{Pp+2*j+1}')
            r.ds(f'ds_write_b128 v{addr}, {vr(q,4)} offset:{off}')
            for j in range(8):
                r.e(f'v_fmac_f32 v{A+8+j}, v{st+1}, v{U+j}')
            for j in range(8):
                r.e(f'v_add_f32 v{A+j}, v{A+j}, v{Pp+j}')
        else:
            for j in range(4):
                r.e(f'v_pk_mul_f32 {vr(Pp+2*j,2)}, {vr(U+2*j,2)}, {vr(st,2)} op_sel_hi:[1,0]')
            for j in range(4):
                r.e(f'v_cvt_pk_bf16_f32 v{q+j}, v{Pp+2*j}, v{Pp+2*j+1}')
            r.ds(f'ds_write_b128 v{addr}, {vr(q,4)} offset:{off}')
            for j in range(4):
                r.e(f'v_pk_fma_f32 {vr(A+8+2*j,2)}, {vr(U+2*j,2)}, {vr(st,2)}, {vr(A+8+2*j,2)} op_sel:[0,1,0]')
            for j in range(4):
                r.e(f'v_pk_add_f32 {vr(A+2*j,2)}, {vr(A+2*j,2)}, {vr(Pp+2*j,2)}')

    def reduce_ext(r, seg, A):
        for j in range(8):
            r.e(f'v_permlane32_swap_b32 v{A+j}, v{A+8+j}')
        for j in range(8):
            r.e(f'v_add_f32 v{A+j}, v{A+j}, v{A+8+j}')
        for j in range(4):
            r.e(f'v_permlane16_swap_b32 v{A+j}, v{A+4+j}')
        for j in range(4):
            r.e(f'v_add_f32 v{A+j}, v{A+j}, v{A+4+j}')
        for rot in (4, 8):
            for j in range(4):
                r.e(f'v_add_f32_dpp v{A+j}, v{A+j}, v{A+j} row_ror:{rot} row_mask:0xf bank_mask:0xf')
        H, Lo = A + 4, A + 6
        r.e(f'v_cvt_pk_bf16_f32 v{H}, v{A}, v{A+1}')
        r.e(f'v_cvt_pk_bf16_f32 v{H+1}, v{A+2}, v{A+3}')
        for j in range(2):
            r.e(f'v_lshlrev_b32 v{A+8+2*j}, 16, v{H+j}')
            r.e(f'v_and_b32 v{A+9+2*j}, 0xffff0000, v{H+j}')
        for j in range(4):
            r.e(f'v_sub_f32 v{A+j}, v{A+j}, v{A+8+j}')
        r.e(f'v_cvt_pk_bf16_f32 v{Lo}, v{A}, v{A+1}')
        r.e(f'v_cvt_pk_bf16_f32 v{Lo+1}, v{A+2}, v{A+3}')
        T = A + 8
        r.e(f'v_lshrrev_b32 v{T}, 5, v1')
        r.e(f'v_bfe_u32 v{T+1}, v1, 4, 1')
        r.e(f'v_lshlrev_b32 v{T+2}, 4, v9')
        r.e(f'v_lshl_add_u32 v{T+2}, v{T+1}, 3, v{T+2}')
        if seg == 0:
            r.e(f'v_lshl_add_u32 v{T+2}, v{T}, 7, v{T+2}')
            r.e(f's_lshl_b32 s5, s{W}, 8')
            r.e(f's_add_u32 s5, s5, {L_Q+512*64}')
            r.e(f'v_add_u32 v{T+2}, s5, v{T+2}')
            r.ds(f'ds_write_b64 v{T+2}, {vr(H,2)}')
            r.ds(f'ds_write_b64 v{T+2}, {vr(Lo,2)} offset:64')
        else:
            r.e(f'v_lshl_add_u32 v{T+2}, v{T}, 8, v{T+2}')
            r.e(f's_lshl_b32 s5, s{W}, 9')
            r.e(f's_add_u32 s5, s5, {L_KV+512*128}')
            r.e(f'v_add_u32 v{T+2}, s5, v{T+2}')
            r.e(f'v_xor_b32 v{T}, {seg-1}, v{T}')
            r.e(f'v_lshl_add_u32 v{T+3}, v{T}, 6, v{T+2}')
            r.e(f'v_xor_b32 v{T+2}, 64, v{T+3}')
            r.ds(f'ds_write_b64 v{T+3}, {vr(H,2)}')
            r.ds(f'ds_write_b64 v{T+2}, {vr(Lo,2)} offset:128')

    def side_chunk(c):
        r = Rec(k)
        for i in range(2):
            for seg in (1, 2):
                prep(r, WR + 16 * c + 8 * i + 4 * (seg - 1), STR + 2 * (2 * c + i), ACC + 16 * (seg - 1),
                     WKa + seg - 1, (128 * c + 16 * i) * 128, seg - 1, plain=(c > 0 and F2MODE == 'il'))
        if c == 3:
            reduce_ext(r, 1, ACC)
            reduce_ext(r, 2, ACC + 16)
        return r.ops

    def xfrag(s):
        return ar(4 * s, 4) if s < 32 else vr(XE, 4)
    cnt = [0]

    def mfma_chunk(steps):
        r = Rec(k)
        tk, stg = {}, {}

        def rd(s):
            st = cnt[0] % NST
            cnt[0] += 1
            stg[s] = st
            o = (s & 15) * 2048 if s < 32 else 16 * 2048
            hi = 1 if s >= 16 else 0
            for t_ in range(2):
                r.ds(f'ds_read_b64_tr_b16 {ar(FBa+8*st+2*t_,2)}, v{AK+hi} offset:{o+t_*512}')
            t = None
            for t_ in range(2):
                t = r.ds(f'ds_read_b64_tr_b16 {ar(FBa+8*st+4+2*t_,2)}, v{AV+hi} offset:{o+t_*512}')
            tk[s] = t
        for s in steps[:NST - 1]:
            rd(s)
        for n, s in enumerate(steps):
            if n + NST - 1 < len(steps):
                rd(steps[n + NST - 1])
            st = stg[s]
            r.wait(lg=tk[s])
            r.e(f'v_mfma_f32_32x32x16_bf16 {vr(AccK,16)}, {ar(FBa+8*st,4)}, {xfrag(s)}, {vr(AccK,16) if s else 0}')
            r.e(f'v_mfma_f32_32x32x16_bf16 {vr(AccV,16)}, {xfrag(s)}, {ar(FBa+8*st+4,4)}, {vr(AccV,16) if s else 0}')
        return r.ops

    def csteps(c):
        return list(range(8 * c, 8 * c + 8))
    if F2MODE == 'il':
        for f in side_chunk(0):
            f()
        k.wait_all(vm=False)
        k.e('s_barrier')
        k.stamp('c0')
        for c in range(1, 4):
            interleave(mfma_chunk(csteps(c - 1)), side_chunk(c))
            k.wait_all(vm=False)
            k.e('s_barrier')
        last_steps = csteps(3) + [32]
    else:
        for c in range(4):
            for f in side_chunk(c):
                f()
        k.wait_all(vm=False)
        k.e('s_barrier')
        k.stamp('c0')
        last_steps = list(range(33))
    k.stamp('c3')
    r = Rec(k)
    r.e(f's_lshl_b32 s4, s{W}, 17')
    r.e(f's_lshl_b32 s5, s{CB}, 7')
    r.e('s_add_u32 s4, s4, s5')
    r.e(f's_lshl_b32 s35, s{W}, 14')
    r.e('s_mov_b32 m0, s35')
    for n in range(8):
        r.vmem(f'buffer_load_dwordx4 v10, {srdname(S_WO)}, s4 offen lds')
        r.e('s_add_u32 s4, s4, 8192')
        r.e('s_add_u32 m0, m0, 1024')
    r.wait(vm=TK['phi'])
    for j in range(4):
        r.e(f'v_lshl_or_b32 v{PHI+j}, v{PHI+4+j}, 16, v{PHI+j}')
    r.e('v_and_b32 v13, 4, v1')
    r.e('v_cmp_eq_u32 vcc, 0, v13')
    for j in range(4):
        r.e(f'v_cndmask_b32 v{PHI+4+j}, v{PHI+j}, 0, vcc')
    for j in range(4):
        r.e(f'v_cndmask_b32 v{PHI+j}, 0, v{PHI+j}, vcc')
    aVF, aPH, aKA, aKB, vONE = 16, 17, 11, 12, 7
    r.e(f's_lshl_b32 s5, s{W}, 11')
    r.e(f's_add_u32 s5, s5, {L_VF}')
    r.e(f'v_add_u32 v{aVF}, s5, v3')
    r.e('v_and_b32 v13, 31, v1')
    r.e('v_mul_u32_u24 v13, 80, v13')
    r.e('v_lshrrev_b32 v14, 5, v1')
    r.e('v_mul_u32_u24 v14, 2560, v14')
    r.e(f's_mul_i32 s5, s{W}, 5120')
    r.e(f's_add_u32 s5, s5, {L_PH}')
    r.e(f'v_add3_u32 v{aPH}, v13, v14, s5')
    r.e('v_and_b32 v13, 15, v1')
    r.e('v_and_b32 v14, 32, v1')
    r.e('v_add_u32 v13, v13, v14')
    r.e('v_lshlrev_b32 v13, 4, v13')
    r.e(f's_lshl_b32 s5, s{TBO}, 8')
    r.e(f's_add_u32 s5, s5, {L_VF}')
    r.e(f'v_add_u32 v{aKA}, s5, v13')
    r.e('v_lshrrev_b32 v14, 5, v1')
    r.e('v_bfe_u32 v15, v1, 2, 2')
    r.e('v_lshl_add_u32 v14, v14, 2, v15')
    r.e('v_mul_u32_u24 v14, 80, v14')
    r.e(f's_mul_i32 s5, s{TBO}, 2560')
    r.e(f's_add_u32 s5, s5, {L_PH}')
    r.e(f'v_add3_u32 v{aKB}, v14, v{NATC}, s5')
    r.e(f'v_mov_b32 v{vONE}, 0x3f803f80')
    interleave(mfma_chunk(last_steps), r.ops)
    k.stamp('kvloop')
    KB, VB, PK, PH, E, T8 = 32, 40, 48, 64, 160, 192

    def proj(Acc):
        for j in range(8):
            k.e(f'v_pk_mul_f32 {vr(Acc+2*j,2)}, {vr(Acc+2*j,2)}, {vr(RS,2)} op_sel_hi:[1,0]')
        for j in range(8):
            k.e(f'v_cvt_pk_bf16_f32 v{KB+j}, v{Acc+2*j}, v{Acc+2*j+1}')
        k.e(f'v_mfma_f32_32x32x16_bf16 {vr(PK,16)}, {vr(PHI,4)}, {vr(KB,4)}, 0')
        k.e(f'v_mfma_f32_32x32x16_bf16 {vr(PK,16)}, {vr(PHI+4,4)}, {vr(KB+4,4)}, {vr(PK,16)}')
    proj(AccK)
    for j in range(8):
        k.e(f'v_pk_mul_f32 {vr(AccV+2*j,2)}, {vr(AccV+2*j,2)}, {vr(RR+2*j,2)}')
    for j in range(8):
        k.e(f'v_cvt_pk_bf16_f32 v{VB+j}, v{AccV+2*j}, v{AccV+2*j+1}')
    k.ds(f'ds_write_b128 v{aVF}, {vr(VB,4)}')
    k.ds(f'ds_write_b128 v{aVF}, {vr(VB+4,4)} offset:1024')
    softmax16(k, PK, E, PH, T8, 8)
    for j in range(4):
        k.ds(f'ds_write_b128 v{aPH}, {vr(PH+4*j,4)} offset:{16*j}')
    k.wait_all(vm=False)
    k.e('s_barrier')
    k.stamp('kepi')
    skipkv = k.newlabel('SKIPKV')
    k.e(f's_cmp_ge_u32 s{W}, 2')
    k.e(f's_cbranch_scc1 {skipkv}')
    KA, KBf, DK = 160, 216, 48
    tks = []
    for ww in range(4):
        for t_ in range(2):
            n = 2 * ww + t_
            k.ds(f'ds_read_b128 {vr(KA+4*n,4)}, v{aKA} offset:{ww*2048+t_*1024}')
            k.ds(f'ds_read_b64_tr_b16 {vr(KBf+4*n,2)}, v{aKB} offset:{ww*5120+t_*16*80}')
            tks.append(k.ds(f'ds_read_b64_tr_b16 {vr(KBf+4*n+2,2)}, v{aKB} offset:{ww*5120+t_*16*80+8*80}'))
    k.e('v_and_b32 v15, 16, v1')
    k.e('v_cmp_eq_u32 vcc, 0, v15')
    k.e(f's_lshl_b32 s10, s{J}, 4')
    k.e(f's_add_u32 s10, s10, s{MB}')
    k.e('s_lshl_b32 s5, s10, 11')
    k.e(f's_lshl_b32 s11, s{W}, 10')
    k.e('s_add_u32 s5, s5, s11')
    k.e(f's_add_u32 s5, s5, {KVB}')
    k.e('s_lshl_b32 s10, s10, 8')
    k.e(f's_lshl_b32 s11, s{W}, 7')
    k.e('s_add_u32 s10, s10, s11')
    k.e(f's_add_u32 s10, s10, {ZP}')
    k.e('v_and_b32 v14, 31, v1')
    k.e('v_lshlrev_b32 v14, 2, v14')
    for n in range(8):
        k.wait(lg=tks[n])
        for j in range(4):
            k.e(f'v_cndmask_b32 v{KA+4*n+j}, v{vONE}, v{KA+4*n+j}, vcc')
        k.e(f'v_mfma_f32_32x32x16_bf16 {vr(DK,16)}, {vr(KA+4*n,4)}, {vr(KBf+4*n,4)}, {vr(DK,16) if n else 0}')
    for j in range(4):
        k.e(f'v_cvt_pk_bf16_f32 v{KB+j}, v{DK+2*j}, v{DK+2*j+1}')
    k.e(f'buffer_store_dwordx4 {vr(KB,4)}, v3, {srdname(S_WS)}, s5 offen sc1')
    k.e(f'buffer_store_dword v{DK+8}, v14, {srdname(S_WS)}, s10 offen sc1')
    k.flush()
    k.label(skipkv)
    k.lg_done = k.lg
    for j in range(16):
        k.e(f'v_mov_b32 v{ACC+j}, 0')
    publish(k, [(F_A, J, MB)])
    k.stamp('pubA')
    for n in range(8):
        k.vmem(f'buffer_load_dwordx4 v10, {srdname(S_WO)}, s4 offen lds')
        k.e('s_add_u32 s4, s4, 8192')
        k.e('s_add_u32 m0, m0, 1024')
    k.e(f's_lshl_b32 s64, s{CB}, 11')
    k.e(f's_cmp_eq_u32 s{W}, 1')
    k.e(f's_cselect_b32 s5, {2*16384}, 0')
    k.e('s_cselect_b64 s[58:59], -1, 0')
    k.e(f's_cmp_eq_u32 s{W}, 2')
    k.e(f's_cselect_b32 s5, {3*16384}, s5')
    k.e('s_add_u32 s64, s64, s5')
    k.e(f's_lshl_b32 s5, s{MB}, 10')
    k.e(f's_add_u32 s5, s5, {16384}')
    k.e(f's_cmp_eq_u32 s{W}, 3')
    k.e('s_cselect_b32 s64, s5, s64')
    k.e(f's_cselect_b32 s5, {480*32}, 0')
    k.e('s_cselect_b32 s59, -1, s59')
    k.e(f's_add_u32 s64, s64, {MP2}')
    k.e('v_lshrrev_b32 v25, 5, v1')
    k.e('v_mul_u32_u24 v25, s5, v25')
    k.e('v_lshl_add_u32 v25, v1, 5, v25')
    k.vmem(f'buffer_load_dwordx4 v[32:35], v25, {srdname(S_WS)}, s64 offen sc1')
    tmv = k.vmem(f'buffer_load_dwordx4 v[36:39], v25, {srdname(S_WS)}, s64 offen offset:16 sc1')
    GV, GA = 244, 247
    k.e('s_mov_b32 s5, 5462')
    for m_ in range(3):
        k.e(f'v_add_u32 v13, {64*m_}, v1')
        k.e('v_mul_u32_u24 v14, s5, v13')
        k.e('v_lshrrev_b32 v14, 16, v14')
        k.e('v_mul_u32_u24 v15, 12, v14')
        k.e('v_sub_u32 v15, v13, v15')
        k.e('v_mul_u32_u24 v14, 2752, v14')
        k.e(f'v_lshl_add_u32 v{GV+m_}, v15, 4, v14')
    STB = 10
    k.e(f's_mul_i32 s{STB}, s{J}, {16*21846}')
    k.e(f's_lshr_b32 s{STB}, s{STB}, 16')
    k.e(f's_lshl_b32 s4, s{MB}, 1')
    k.e(f's_add_u32 s4, s4, s{NBO}')
    k.e(f's_mul_i32 s4, s4, {16*2752}')
    k.e(f's_lshl_b32 s5, s{STB}, 5')
    k.e('s_add_u32 s4, s4, s5')
    k.e(f's_mul_i32 s5, s{NBO}, 6400')
    k.e(f's_mul_i32 s11, s{TBO}, 3104')
    k.e('s_add_u32 s5, s5, s11')
    k.e(f's_add_u32 s5, s5, {L_UP}')
    k.e(f's_cmp_eq_u32 s{TBO}, 0')
    for n in range(3):
        k.e(f's_cselect_b32 s{60+n}, s{S_G+n}, s{S_U+n}')
    k.e('s_mov_b32 s63, 0x00020000')
    for m_ in range(3):
        k.e(f's_add_u32 m0, s5, {m_*1024}')
        tup = k.vmem(f'buffer_load_dwordx4 v{GV+m_}, s[60:63], s4 offen lds')
    k.e('s_lshr_b32 s4, s2, 3')
    k.e('s_lshl_b32 s4, s4, 2')
    k.e(f's_add_u32 s3, s4, s{W}')
    if TOUCH:
        k.e('v_lshrrev_b32 v14, 4, v1')
        k.e('v_mul_u32_u24 v14, 2752, v14')
        k.e('v_and_b32 v15, 15, v1')
        k.e('v_mul_u32_u24 v15, 96, v15')
        k.e('v_add_u32 v14, v14, v15')
        k.e(f's_mul_i32 s4, s3, {4*2752}')
        k.e('s_and_b32 s5, s2, 1')
        k.e('s_mul_i32 s5, s5, 1344')
        k.e('s_add_u32 s4, s4, s5')
        k.vmem(f'buffer_load_dword v26, v14, {srdname(S_G)}, s4 offen')
        k.vmem(f'buffer_load_dword v26, v14, {srdname(S_U)}, s4 offen')
    r = Rec(k)
    for c in range(4):
        for i in range(2):
            prep(r, WQR + 4 * (2 * c + i), STR + 2 * (2 * c + i), ACC, WQa, (128 * c + 16 * i) * 64, i)
    reduce_ext(r, 0, ACC)
    r.run()
    LM = k.newlabel('PM')
    CM = k.newlabel('PMC')
    DM = k.newlabel('PMD')
    k.e('s_mov_b32 s57, 0')
    k.wait(vm=tup)
    k.e(f's_branch {CM}')
    k.flush()
    k.label(LM)
    k.e(f'buffer_load_dwordx4 v[32:35], v25, {srdname(S_WS)}, s64 offen sc1')
    k.e(f'buffer_load_dwordx4 v[36:39], v25, {srdname(S_WS)}, s64 offen offset:16 sc1')
    k.e('s_add_u32 s57, s57, 1')
    k.e('s_waitcnt vmcnt(0)')
    k.label(CM)
    k.e(f's_cmp_ge_u32 s57, {SPIN_LIMIT}')
    k.e(f's_cbranch_scc1 {DM}')
    k.e(f'v_xor_b32 v14, s{NONCE}, v33')
    for n in (35, 37, 39):
        k.e(f'v_xor_b32 v15, s{NONCE}, v{n}')
        k.e('v_or_b32 v14, v14, v15')
    k.e('v_cmp_ne_u32 vcc, 0, v14')
    k.e(f's_cbranch_vccnz {LM}')
    k.label(DM)
    k.e('v_add_f32 v32, v32, v34')
    k.e('v_add_f32 v36, v36, v38')
    k.e('v_add_f32 v32, v32, v36')
    bf16r(k, 'v32', 'v32', 'v33')
    k.e('v_add_f32 v34, 1.0, v32')
    bf16r(k, 'v34', 'v34', 'v33')
    k.e('v_cndmask_b32 v32, v32, v34, s[58:59]')
    k.e('v_lshlrev_b32 v13, 2, v0')
    k.e(f'v_add_u32 v13, {L_MV}, v13')
    k.ds('ds_write_b32 v13, v32')
    k.e('v_lshlrev_b32 v13, 1, v0')
    k.e(f'v_add_u32 v13, {L_MVB}, v13')
    k.ds('ds_write_b16_d16_hi v13, v32')
    k.wait_all(vm=False)
    k.e('s_barrier')
    k.stamp('prepQ')
    if TOUCH:
        k.e('v_lshlrev_b32 v13, 7, v1')
        k.e('s_lshl_b32 s5, s3, 13')
        k.vmem(f'buffer_load_dword v26, v13, {srdname(S_DN)}, s5 offen')
        k.e(f's_add_u32 s5, s5, {128*8192}')
        k.vmem(f'buffer_load_dword v26, v13, {srdname(S_DN)}, s5 offen')
    AccQ, NSQ = 216, 4
    tq = {}
    r = Rec(k)

    def rd_q(s):
        st = s % NSQ
        t = None
        for t_ in range(2):
            t = r.ds(f'ds_read_b64_tr_b16 {ar(FBa+4*st+2*t_,2)}, v{AQ} offset:{s*1024+t_*256}')
        return t
    for s in range(NSQ - 1):
        tq[s] = rd_q(s)
    for s in range(33):
        if s + NSQ - 1 < 33:
            tq[s + NSQ - 1] = rd_q(s + NSQ - 1)
        st = s % NSQ
        r.wait(lg=tq[s])
        r.e(f'v_mfma_f32_32x32x16_bf16 {vr(AccQ,16)}, {ar(FBa+4*st,4)}, {xfrag(s)}, {vr(AccQ,16) if s else 0}')
    r2 = Rec(k)
    r2.e(f'v_and_b32 v{GA}, 1, v1')
    r2.e(f'v_lshlrev_b32 v{GA}, 4, v{GA}')
    r2.e('v_bfe_u32 v12, v1, 1, 1')
    r2.e(f'v_lshl_add_u32 v{GA}, v12, 3, v{GA}')
    r2.e('v_bfe_u32 v12, v1, 2, 2')
    r2.e('v_lshrrev_b32 v6, 5, v1')
    r2.e('v_lshl_add_u32 v12, v6, 3, v12')
    r2.e('v_mul_u32_u24 v12, 192, v12')
    r2.e(f'v_add_u32 v{GA}, v{GA}, v12')
    r2.e('v_bfe_u32 v12, v1, 4, 1')
    r2.e('v_mul_u32_u24 v12, 3104, v12')
    r2.e(f'v_add_u32 v{GA}, v{GA}, v12')
    r2.e(f's_min_u32 s4, s{W}, 2')
    r2.e('s_lshl_b32 s4, s4, 1')
    r2.e('s_lshl_b32 s5, s4, 5')
    r2.e(f's_add_u32 s5, s5, {L_UP}')
    r2.e(f'v_add_u32 v12, s5, v{GA}')
    r2.e('v_and_b32 v13, 1, v1')
    r2.e('v_xor_b32 v13, 1, v13')
    r2.e('v_lshlrev_b32 v13, 6, v13')
    r2.e('v_lshl_add_u32 v13, v6, 4, v13')
    r2.e(f'v_add_u32 v13, {L_MVB+384}, v13')
    r2.e(f's_lshl_b32 s5, s{NBO}, 7')
    r2.e(f's_add_u32 s5, s5, {L_MV}')
    r2.e('v_lshlrev_b32 v14, 5, v6')
    r2.e('v_add_u32 v14, s5, v14')
    r2.e(f's_lshl_b32 s58, s{J}, 15')
    r2.e(f's_lshl_b32 s59, s{NBO}, 14')
    r2.e('s_add_u32 s58, s58, s59')
    r2.e(f's_lshl_b32 s59, s{TBO}, 10')
    r2.e('s_add_u32 s58, s58, s59')
    r2.e(f's_add_u32 s58, s58, {KVB}')
    r2.e(f's_lshl_b32 s59, s{J}, 12')
    r2.e(f's_lshl_b32 s11, s{W}, 10')
    r2.e('s_add_u32 s59, s59, s11')
    r2.e(f's_add_u32 s59, s59, {ZP}')
    r2.e('v_lshlrev_b32 v16, 2, v1')
    r2.e('v_and_b32 v17, 31, v1')
    r2.e('v_lshlrev_b32 v17, 6, v17')
    r2.e(f's_lshl_b32 s11, s{W}, 11')
    r2.e(f's_add_u32 s11, s11, {L_KVT}')
    r2.e('v_lshl_add_u32 v18, v6, 4, v17')
    r2.e('v_add_u32 v18, s11, v18')
    r2.e(f's_lshl_b32 s11, s{NBO}, 12')
    r2.e(f's_lshl_b32 s5, s{TBO}, 1')
    r2.e('s_add_u32 s11, s11, s5')
    r2.e(f's_add_u32 s11, s11, {L_KVT+32}')
    r2.e('v_lshl_add_u32 v19, v6, 11, v17')
    r2.e('v_add_u32 v19, s11, v19')
    r2.e('v_bfe_u32 v20, v1, 2, 2')
    r2.e('v_lshl_add_u32 v20, v6, 3, v20')
    r2.e(f'v_lshl_add_u32 v20, v20, 6, v{NATC}')
    r2.e(f'v_add_u32 v20, {L_KVT}, v20')
    interleave(r.ops, r2.ops)
    VI, UF, UD = 80, 88, 160
    for t_ in range(2):
        k.ds(f'ds_read_b128 {vr(VI+4*t_,4)}, v13 offset:{t_*32}')
    tuf = []
    for i in range(2):
        for t_ in range(2):
            k.ds(f'ds_read_b64_tr_b16 {vr(UF+8*i+4*t_,2)}, v12 offset:{i*32+t_*6400}')
            tuf.append(k.ds(f'ds_read_b64_tr_b16 {vr(UF+8*i+4*t_+2,2)}, v12 offset:{i*32+t_*6400+768}'))
    GAr, S2r, GBr = 104, 120, 192
    proj(AccQ)
    for i in range(2):
        for t_ in range(2):
            k.wait(lg=tuf[2 * i + t_])
            k.e(f'v_mfma_f32_32x32x16_bf16 {vr(UD+16*i,16)}, {vr(VI+4*t_,4)}, {vr(UF+8*i+4*t_,4)}, {vr(UD+16*i,16) if t_ else 0}')
    for vec, R in enumerate((GAr, S2r, GBr)):
        for q in range(2):
            for h in range(2):
                k.ds(f'ds_read_b128 {vr(R+8*q+4*h,4)}, v14 offset:{vec*256+q*64+h*16}')
    k.e(f's_lshl_b32 s5, s{J}, 4')
    k.e(f's_add_u32 s5, s5, s{MB}')
    k.e('s_mul_i32 s5, s5, 1536')
    k.e('s_lshl_b32 s11, s4, 8')
    k.e('s_add_u32 s5, s5, s11')
    k.e(f's_add_u32 s5, s5, {UPART}')
    k.e('v_lshlrev_b32 v12, 3, v1')
    softmax16(k, PK, 208, PH, 136, 8)
    k.e('s_mov_b64 exec, 0xffffffff')
    for i in range(2):
        k.vmem(f'buffer_store_dwordx2 {vr(UD+16*i,2)}, v12, {srdname(S_WS)}, s5 offen offset:{i*256} sc1')
    k.e('s_mov_b64 exec, -1')
    for j in range(4):
        k.e(f'v_permlane32_swap_b32 v{PH+j}, v{PH+4+j}')
        k.e(f'v_permlane32_swap_b32 v{PH+8+j}, v{PH+12+j}')
    KS = 136
    for j in range(8):
        k.e(f'v_mov_b32 v{KS+j}, 0')
    k.e(f's_lshl_b32 s4, s{MB}, 2')
    k.e(f's_add_u32 s4, s4, s{W}')
    k.e('s_lshl_b32 s4, s4, 5')
    k.e(f's_lshl_b32 s5, s{J}, 1')
    k.e('s_add_u32 s4, s4, s5')
    k.e('s_lshl_b32 s4, s4, 10')
    k.e(f's_add_u32 s4, s4, {OBUF}')
    k.stamp('qdone')
    poll(k, F_A, J)
    k.stamp('pollA')
    PQ, PZ = 144, 176
    tp = []
    for p in range(8):
        tp.append(k.vmem(f'buffer_load_dwordx4 {vr(PQ+4*p,4)}, v3, {srdname(S_WS)}, s58 offen offset:{(p&1)*2048} sc1'))
        if p & 1:
            k.e('s_add_u32 s58, s58, 4096')
    for p in range(4):
        tz = k.vmem(f'buffer_load_dword v{PZ+p}, v16, {srdname(S_WS)}, s59 offen offset:{p*256} sc1')
    for p in range(8):
        k.wait(vm=tp[p])
        for j in range(4):
            k.e(f'v_dot2c_f32_bf16 v{KS+2*j}, s6, v{PQ+4*p+j}')
            k.e(f'v_dot2c_f32_bf16 v{KS+2*j+1}, s7, v{PQ+4*p+j}')
    for j in range(4):
        k.e(f'v_cvt_pk_bf16_f32 v{32+j}, v{KS+2*j}, v{KS+2*j+1}')
    k.ds('ds_write_b128 v18, v[32:35]')
    k.wait(vm=tz)
    k.e(f'v_add_f32 v{PZ}, v{PZ}, v{PZ+1}')
    k.e(f'v_add_f32 v{PZ+2}, v{PZ+2}, v{PZ+3}')
    k.e(f'v_add_f32 v{PZ}, v{PZ}, v{PZ+2}')
    k.e(f'v_cvt_pk_bf16_f32 v{PZ}, v{PZ}, v{PZ}')
    k.ds(f'ds_write_b16 v19, v{PZ}')
    k.ds(f'ds_write_b16 v19, v{PZ} offset:8')
    k.wait_all(vm=False)
    k.e('s_barrier')
    AF, D = 144, 32
    ta = {}
    for h in range(2):
        for hv in range(2):
            for t in range(2):
                a = AF + 16 * h + 8 * hv + 4 * t
                o = (hv * 2 + h) * 2048 + t * 1024
                k.ds(f'ds_read_b64_tr_b16 {vr(a,2)}, v20 offset:{o}')
                ta[(h, hv, t)] = k.ds(f'ds_read_b64_tr_b16 {vr(a+2,2)}, v20 offset:{o+256}')
    for h in range(2):
        for hv in range(2):
            for t in range(2):
                k.wait(lg=ta[(h, hv, t)])
                a = AF + 16 * h + 8 * hv + 4 * t
                k.e(f'v_mfma_f32_32x32x16_bf16 {vr(D+16*h,16)}, {vr(a,4)}, {vr(PH+8*t+4*h,4)}, {vr(D+16*h,16) if (t or hv) else 0}')
    for h in range(2):
        d = D + 16 * h
        k.e(f'v_add_f32 v{d+8}, v{d+8}, v{d+9}')
        k.e(f'v_add_f32 v{d+8}, 0x358637bd, v{d+8}')
        k.e(f'v_rcp_f32 v{d+8}, v{d+8}')
        for j in range(4):
            k.e(f'v_pk_mul_f32 {vr(d+2*j,2)}, {vr(d+2*j,2)}, {vr(d+8,2)} op_sel_hi:[1,0]')
        for j in range(4):
            k.e(f'v_cvt_pk_bf16_f32 v{d+12+j}, v{d+2*j}, v{d+2*j+1}')
        k.vmem(f'buffer_store_dwordx4 {vr(d+12,4)}, v3, {srdname(S_WS)}, s4 offen offset:{h*1024} sc1')
    publish(k, [(F_B, MB, J), (F_E, J, MB)])
    k.stamp('pubB')
    AREA = {0: 3, 1: 4, 2: 5, 3: 0, 4: 1, 5: 2, 6: 3, 7: 4}
    GS, GL = 58, 59
    k.e(f's_mul_i32 s{GS}, s{W}, {16*2752}')
    k.e(f's_lshl_b32 s5, s{STB}, 5')
    k.e(f's_add_u32 s{GS}, s{GS}, s5')
    k.e(f's_mul_i32 s{GL}, s{W}, 6400')
    td = {}

    def gdma(r, c):
        t = None
        r.e(f's_add_u32 s5, s{GS}, {c*64*2752}')
        for u in range(2):
            for m_ in range(3):
                r.e(f's_add_u32 m0, s{GL}, {AREA[c]*25600+u*3104+m_*1024}')
                t = r.vmem(f'buffer_load_dwordx4 v{GV+m_}, {srdname(S_G+4*u)}, s5 offen lds')
        td[c] = t
    TB_O, TB_X, BLK = 60, 61, 62
    k.e(f's_lshl_b32 s4, s{MB}, 2')
    k.e(f's_lshl_b32 s5, s{TH}, 1')
    k.e('s_add_u32 s4, s4, s5')
    k.e(f's_add_u32 s{TB_O}, s4, s{TBO}')
    k.e(f's_xor_b32 s{TB_X}, s{TB_O}, 1')
    k.e(f's_lshl_b32 s{BLK}, s{CB}, 1')
    k.e(f's_add_u32 s{BLK}, s{BLK}, s{NBO}')
    XR = 96
    k.e('v_and_b32 v5, 31, v1')
    k.e('v_lshlrev_b32 v5, 10, v5')
    k.e('v_lshl_add_u32 v5, v6, 4, v5')
    k.e(f's_lshl_b32 s4, s{TB_O}, 15')
    k.e(f's_lshl_b32 s5, s{BLK}, 6')
    k.e('s_add_u32 s63, s4, s5')
    for q in range(2):
        k.vmem(f'buffer_load_dwordx4 {vr(XR+4*q,4)}, v5, {srdname(S_X)}, s63 offen offset:{q*32}')
    for c in range(3):
        gdma(k, c)
    tr_addr_128(k, 8, 9, NBO, 35, 10)
    PA, FBw = 32, 64
    for s in range(8):
        for sa in range(2):
            k.ds(f'ds_read_b64_tr_b16 {ar(FBw+8*s+4*sa,2)}, v{8+sa} offset:{s*2048}')
            k.ds(f'ds_read_b64_tr_b16 {ar(FBw+8*s+4*sa+2,2)}, v{8+sa} offset:{s*2048+512}')
    for n, s_ in enumerate((TB_O, TB_X)):
        k.e(f's_lshl_b32 s{4+n}, s{s_}, 15')
        k.e(f's_lshl_b32 s11, s{W}, 13')
        k.e(f's_add_u32 s{4+n}, s{4+n}, s11')
        k.e(f's_add_u32 s{4+n}, s{4+n}, {OBUF}')
    k.wait_all(vm=False)
    k.e('s_barrier')
    k.stamp('preB')
    poll(k, F_B, MB)
    k.stamp('pollB')
    tl = {}
    for s in range(8):
        if s == 4:
            k.e('s_add_u32 s4, s4, 4096')
            k.e('s_add_u32 s5, s5, 4096')
        for tb in range(2):
            tl[s] = k.vmem(f'buffer_load_dwordx4 {ar(8*s+4*tb,4)}, v3, {srdname(S_WS)}, s{4+tb} offen offset:{(s&3)*1024} sc1')
    for s in range(8):
        k.wait(vm=tl[s])
        for sa in range(2):
            for sb in range(2):
                a = PA + 16 * (2 * sa + sb)
                k.e(f'v_mfma_f32_32x32x16_bf16 {vr(a,16)}, {ar(FBw+8*s+4*sa,4)}, {ar(8*s+4*sb,4)}, {vr(a,16) if s else 0}')
    k.stamp('p2loop')
    xreduce(k, PA, W, 0, 136, 11)
    k.stamp('p2red')
    X, X1 = 48, 208
    for j in range(8):
        k.e(f'v_lshlrev_b32 v{X+2*j}, 16, v{XR+j}')
        k.e(f'v_and_b32 v{X+2*j+1}, 0xffff0000, v{XR+j}')
    for j in range(8):
        k.e(f'v_pk_fma_f32 {vr(X1+2*j,2)}, {vr(PA+2*j,2)}, {vr(GAr+2*j,2)}, {vr(X+2*j,2)}')
    for j in range(8):
        k.e(f'v_pk_mul_f32 {vr(X+2*j,2)}, {vr(X1+2*j,2)}, {vr(S2r+2*j,2)}')
    for j in range(8):
        k.e(f'v_cvt_pk_bf16_f32 v{64+j}, v{X+2*j}, v{X+2*j+1}')
    k.e(f's_lshl_b32 s4, s{TB_O}, 15')
    k.e(f's_lshl_b32 s5, s{BLK}, 11')
    k.e('s_add_u32 s4, s4, s5')
    k.e(f's_add_u32 s4, s4, {X1S}')
    for q in range(2):
        k.vmem(f'buffer_store_dwordx4 {vr(64+4*q,4)}, v3, {srdname(S_WS)}, s4 offen offset:{q*1024} sc1')
    k.e(f'v_pk_add_f32 v[72:73], {vr(X1,2)}, {vr(X1+2,2)}')
    k.e(f'v_pk_mul_f32 v[74:75], {vr(X1,2)}, {vr(X1,2)}')
    for j in range(1, 8):
        if j >= 2:
            k.e(f'v_pk_add_f32 v[72:73], v[72:73], {vr(X1+2*j,2)}')
        k.e(f'v_pk_fma_f32 v[74:75], {vr(X1+2*j,2)}, {vr(X1+2*j,2)}, v[74:75]')
    k.e('v_add_f32 v72, v72, v73')
    k.e('v_add_f32 v74, v74, v75')
    k.e('v_permlane32_swap_b32 v72, v74')
    k.e('v_add_f32 v72, v72, v74')
    k.e('v_and_b32 v10, 31, v1')
    k.e('v_lshlrev_b32 v10, 4, v10')
    k.e('v_lshl_add_u32 v10, v6, 15, v10')
    k.e(f's_lshr_b32 s4, s{BLK}, 2')
    k.e('s_lshl_b32 s4, s4, 16')
    k.e(f's_and_b32 s5, s{BLK}, 3')
    k.e('s_lshl_b32 s5, s5, 2')
    k.e('s_add_u32 s4, s4, s5')
    k.e(f's_lshl_b32 s5, s{TB_O}, 9')
    k.e('s_add_u32 s4, s4, s5')
    k.e(f's_add_u32 s4, s4, {ST2}')
    k.vmem(f'buffer_store_dword v72, v10, {srdname(S_WS)}, s4 offen sc1')
    publish(k, [(F_C, MB, J)])
    k.stamp('pubC')
    gdma(k, 3)
    poll(k, F_E, J)
    k.e('v_min_u32 v11, 191, v0')
    k.e('v_lshlrev_b32 v11, 3, v11')
    k.e(f's_mul_i32 s4, s{J}, {16*1536}')
    k.e(f's_add_u32 s4, s4, {UPART}')
    tu = []
    for p in range(16):
        tu.append(k.vmem(f'buffer_load_dwordx2 {vr(32+2*p,2)}, v11, {srdname(S_WS)}, s4 offen offset:{(p&1)*1536} sc1'))
        if p & 1:
            k.e('s_add_u32 s4, s4, 3072')
    gdma(k, 4)
    gdma(k, 5)
    for p in range(1, 16):
        k.wait(vm=tu[p])
        k.e(f'v_pk_add_f32 v[32:33], v[32:33], {vr(32+2*p,2)}')
    k.e('v_cvt_pk_bf16_f32 v34, v32, v33')
    k.e('v_lshlrev_b32 v35, 16, v34')
    k.e('v_and_b32 v36, 0xffff0000, v34')
    k.e('v_sub_f32 v32, v32, v35')
    k.e('v_sub_f32 v33, v33, v36')
    k.e('v_cvt_pk_bf16_f32 v38, v35, v32')
    k.e('v_cvt_pk_bf16_f32 v39, v36, v33')
    k.e(f'v_add_u32 v11, {L_EXT}, v11')
    k.ds('ds_write_b64 v11, v[38:39]')
    k.e('v_and_b32 v11, 31, v1')
    k.e('v_lshlrev_b32 v11, 3, v11')
    k.e(f'v_add_u32 v11, {L_EXT}, v11')
    TB = 11
    k.e(f's_lshl_b32 s{TB}, s{MB}, 2')
    k.e(f's_add_u32 s{TB}, s{TB}, s{W}')
    k.e(f's_lshl_b32 s4, s{TB}, 15')
    k.e(f's_add_u32 s6, s4, {X1S}')
    k.e(f's_lshl_b32 s7, s{TB}, 9')
    k.e(f's_add_u32 s7, s7, {ST2}')
    k.e(f'v_add_u32 v{GA+1}, 0xc800, v{GA}')
    k.e(f'v_add_u32 v{GA+2}, 0x19000, v{GA}')
    EXa = 128
    for b in range(6):
        k.e(f'v_accvgpr_write_b32 a{EXa+4*b+2}, 0')
        k.e(f'v_accvgpr_write_b32 a{EXa+4*b+3}, 0')
    k.stamp('preC')
    poll(k, F_C, MB)
    k.stamp('pollC')
    A3, FB3, SVb, XE3, R2 = 64, 16, 224, 160, 164
    tact = {}

    def act3(s):
        if (s & 3) == 0:
            k.e(f's_add_u32 s4, s6, {s*1024}')
        tact[s] = k.vmem(f'buffer_load_dwordx4 {ar(4*s,4)}, v3, {srdname(S_WS)}, s4 offen offset:{(s&3)*1024} sc1')
    PRE3 = 8
    for s in range(PRE3):
        act3(s)
    k.wait_all(vm=False)
    k.e('s_barrier')
    for b in range(6):
        k.ds(f'ds_read_b64 {ar(EXa+4*b,2)}, v11 offset:{b*256}')
    tr3 = {}

    def rd3(s, b):
        o = AREA[s >> 2] * 25600 + (s & 3) * 6400
        a = GA + o // 51200
        o = o % 51200
        f = FB3 + 24 * (s & 1) + 4 * b
        k.ds(f'ds_read_b64_tr_b16 {vr(f,2)}, v{a} offset:{o+b*32}')
        tr3[(s, b)] = k.ds(f'ds_read_b64_tr_b16 {vr(f+2,2)}, v{a} offset:{o+b*32+768}')
    for b in range(6):
        rd3(0, b)
    for s in range(32):
        if s in (5, 9):
            k.e('s_barrier')
            gdma(k, 6 if s == 5 else 7)
        if s == 22:
            k.wait(vm=td[7])
            k.e('s_barrier')
        if s + PRE3 < 32:
            act3(s + PRE3)
            if s + PRE3 + 1 < 32 and s < 0:
                pass
        if s == 24:
            for b in range(4):
                tst = k.vmem(f'buffer_load_dwordx4 {vr(SVb+4*b,4)}, v10, {srdname(S_WS)}, s7 offen sc1')
                if b < 3:
                    k.e('s_add_u32 s7, s7, 65536')
        k.wait(vm=tact[s])
        for b in range(6):
            k.wait(lg=tr3[(s, b)])
            a = A3 + 16 * b
            k.e(f'v_mfma_f32_32x32x16_bf16 {vr(a,16)}, {vr(FB3+24*(s&1)+4*b,4)}, {ar(4*s,4)}, {vr(a,16) if s else 0}')
            if s + 1 < 32:
                rd3(s + 1, b)
        if s == 29:
            k.wait(vm=tst)
            for i in (1, 2, 4, 8):
                for j in range(0, 16, 2 * i):
                    k.e(f'v_add_f32 v{SVb+j}, v{SVb+j}, v{SVb+j+i}')
            k.e(f'v_mov_b32 v{SVb+1}, v{SVb}')
            k.e(f'v_permlane32_swap_b32 v{SVb}, v{SVb+1}')
        if s == 30:
            ln_finalize(k, SVb, SVb + 1, XE3, R2, SVb + 2, True)
            k.e(f'v_mul_f32 v{R2}, v{R2}, v{R2}')
            k.e(f's_mul_i32 s7, s{TB}, 86')
            k.e(f's_add_u32 s7, s7, s{STB}')
            k.e('s_lshl_b32 s7, s7, 10')
            k.e(f's_add_u32 s7, s7, {HH}')
            k.e('s_add_u32 s6, s7, 3072')
    for b in range(6):
        a = A3 + 16 * b
        k.e(f'v_mfma_f32_32x32x16_bf16 {vr(a,16)}, {ar(EXa+4*b,4)}, {vr(XE3,4)}, {vr(a,16)}')
    k.stamp('p3loop')
    for b in range(6):
        a = A3 + 16 * b
        for j in range(4):
            k.e(f'v_pk_mul_f32 {vr(a+2*j,2)}, {vr(a+2*j,2)}, {vr(a+8+2*j,2)}')
        for j in range(4):
            k.e(f'v_pk_mul_f32 {vr(a+2*j,2)}, {vr(a+2*j,2)}, {vr(R2,2)} op_sel_hi:[1,0]')
        for j in range(4):
            k.e(f'v_cvt_pk_bf16_f32 v{a+8+j}, v{a+2*j}, v{a+2*j+1}')
        k.vmem(f'buffer_store_dwordx4 {vr(a+8,4)}, v3, {srdname(S_WS)}, s{7 if b < 3 else 6} offen offset:{(b%3)*1024} sc1')
    publish(k, [(F_D, MB, J)])
    k.stamp('pubD')
    NK, RING, KS0 = 22, 20, 58
    k.e(f's_mul_i32 s{KS0}, s{W}, 22')
    k.e(f's_cmp_eq_u32 s{W}, 3')
    k.e(f's_cselect_b32 s{KS0}, 65, s{KS0}')
    stage_addr(k, 10, 11, 12, 1024)
    k.e(f's_lshl_b32 s6, s{KS0}, 14')
    k.e(f's_lshl_b32 s5, s{CB}, 7')
    k.e('s_add_u32 s6, s6, s5')
    k.e(f's_mul_i32 s59, s{W}, {RING*2048}')

    def ddma(s):
        t = None
        for h in range(2):
            k.e(f's_add_u32 m0, s59, {(s%RING)*2048+h*1024}')
            t = k.vmem(f'buffer_load_dwordx4 v10, {srdname(S_DN)}, s6 offen lds')
            k.e('s_add_u32 s6, s6, 8192')
        return t
    for s in range(DPRE):
        ddma(s)
    tr_addr_128(k, 8, 9, NBO, 59, 12)
    for n, s_ in enumerate((TB_O, TB_X)):
        k.e(f's_mul_i32 s{4+n}, s{s_}, 86')
        k.e(f's_add_u32 s{4+n}, s{4+n}, s{KS0}')
        k.e(f's_lshl_b32 s{4+n}, s{4+n}, 10')
        k.e(f's_add_u32 s{4+n}, s{4+n}, {HH}')
    k.stamp('preD')
    poll(k, F_D, MB)
    k.stamp('pollD')
    tl, t4, tdd = {}, {}, {}

    def act4(s):
        if s and (s & 3) == 0:
            k.e('s_add_u32 s4, s4, 4096')
            k.e('s_add_u32 s5, s5, 4096')
        if s == NK - 1:
            k.e(f's_cmp_ge_u32 s{W}, 2')
            k.e('s_cselect_b32 s4, 0x7f000000, s4')
            k.e('s_cselect_b32 s5, 0x7f000000, s5')
        for tb in range(2):
            tl[s] = k.vmem(f'buffer_load_dwordx4 {ar(8*s+4*tb,4)}, v3, {srdname(S_WS)}, s{4+tb} offen offset:{(s&3)*1024} sc1')
    PRE4 = 6
    for s in range(PRE4):
        act4(s)
    FB4 = 96

    def rd4(s):
        st = s % 3
        if s in tdd:
            k.wait(vm=tdd[s])
        for sa in range(2):
            k.ds(f'ds_read_b64_tr_b16 {vr(FB4+8*st+4*sa,2)}, v{8+sa} offset:{(s%RING)*2048}')
            t4[s] = k.ds(f'ds_read_b64_tr_b16 {vr(FB4+8*st+4*sa+2,2)}, v{8+sa} offset:{(s%RING)*2048+512}')
    rd4(0)
    rd4(1)
    nd = DPRE
    for s in range(NK):
        if s + 2 < NK:
            rd4(s + 2)
        if nd < NK and s >= 2 and (nd < RING or nd - RING <= s - 2):
            tdd[nd] = ddma(nd)
            nd += 1
        if s + PRE4 < NK:
            act4(s + PRE4)
        k.wait(vm=tl[s], lg=t4[s])
        st = s % 3
        for sa in range(2):
            for sb in range(2):
                a = PA + 16 * (2 * sa + sb)
                k.e(f'v_mfma_f32_32x32x16_bf16 {vr(a,16)}, {vr(FB4+8*st+4*sa,4)}, {ar(8*s+4*sb,4)}, {vr(a,16) if s else 0}')
    assert nd == NK
    k.stamp('p4loop')
    k.e('s_barrier')
    xreduce(k, PA, W, 0, 120, 11)
    for j in range(8):
        k.e(f'v_pk_fma_f32 {vr(PA+2*j,2)}, {vr(PA+2*j,2)}, {vr(GBr+2*j,2)}, {vr(X1+2*j,2)}')
    for j in range(8):
        k.e(f'v_cvt_pk_bf16_f32 v{64+j}, v{PA+2*j}, v{PA+2*j+1}')
    for q in range(2):
        k.vmem(f'buffer_store_dwordx4 {vr(64+4*q,4)}, v5, {srdname(S_OUT)}, s63 offen offset:{q*32}')
    k.rt_end(STAMP + 0xF0000, S_WS)
    k.dump_stamps(W, STAMP + 0x20000, S_WS)
    k.label(end)
    k.e('s_endpgm')
    k.label('L_CODE_END')
    return k, 256, 176, (256, 256, 163840)


TOUCH = True
F2MODE = 'il'
DPRE = 20


def build1(kern, path):
    k, nv, na, (g, b, lds) = kern
    s = HEADER + f'; @launch grid=({g},1,1) block=({b},1,1) lds={lds}\n'
    s += '.amdgcn_target "amdgcn-amd-amdhsa--gfx950"\n.text\n'
    c, d = kernel_text(k, nv, na)
    s += c + '.section .rodata,"a"\n' + d
    open(path, 'w').write(s)


if __name__ == '__main__':
    import sys
    for a in sys.argv[1:]:
        kk, vv = a.split('=')
        globals()[kk] = eval(vv)
    build1(gen_main(), 'out4.s')
    Kern.STAMPS = True
    km = gen_main()
    build1(km, 'out4_st.s')
    json.dump({'1': km[0].stamps}, open('stamps.json', 'w'))
```
